```python
import torch

def _softmax(x, axis=-1):
    return torch.softmax(x, dim=axis)
def _gelu(x):
    return torch.nn.functional.gelu(x, approximate="tanh")
def _silu(x):
    return torch.nn.functional.silu(x)
def _sigmoid(x):
    return torch.sigmoid(x)
def _layernorm(x, axis=-1, eps=1e-5):
    m = x.mean(dim=axis, keepdim=True)
    v = x.var(dim=axis, keepdim=True, unbiased=False)
    return (x - m) / torch.sqrt(v + eps)
def _scatter_add(tgt, idx, src, axis=0):
    return tgt.clone().index_add_(axis, idx, src)
def _segment_sum(src, seg, n):
    out = torch.zeros((n,) + src.shape[1:], dtype=src.dtype)
    return out.index_add_(0, seg, src)
def _pad(x, pw):
    flat = tuple(v for pair in reversed(pw) for v in pair)
    return torch.nn.functional.pad(x, flat)

kernel_name = 'recurrent_scan__sliding_block_cached__geglu_ffn__prompt'

def setup_inputs():

    _w = (lambda a: (lambda t: t.to(torch.bfloat16) if t.is_floating_point() else t)(torch.as_tensor(a)))
    def _A_setup():
        B, Sq, D = 1, 2048, 1024
        Hq, Hkv, Sk, Dh = 32, 4, 2048, 128
        assert Hq % Hkv == 0, (Hq, Hkv)
        return {
            "x": _w((lambda *s: torch.randn(*s, dtype=torch.bfloat16) * 0.05)(B, Sq, D)),
            "k_cache": _w((lambda *s: torch.randn(*s, dtype=torch.bfloat16) * 0.8)(B, Hkv, Sk, Dh)),
            "v_cache": _w((lambda *s: torch.randn(*s, dtype=torch.bfloat16) * 0.2)(B, Hkv, Sk, Dh)),
            "wq": _w((lambda *s: torch.randn(*s, dtype=torch.bfloat16) * 0.8)(D, Hq * Dh) * (D ** -0.5)),
            "wo": _w((lambda *s: torch.randn(*s, dtype=torch.bfloat16) * 0.2)(Hq * Dh, D) * ((Hq * Dh) ** -0.5)),
        }
    _A_in = _A_setup()

    def _B_setup():
        B, S, D, F = 1, 2048, 1024, 3584
        return {
            "x": _w((lambda *s: torch.randn(*s, dtype=torch.bfloat16) * 0.05)(B, S, D)),
            "w_gate": _w((lambda *s: torch.randn(*s, dtype=torch.bfloat16) * 0.1)(D, F)),
            "w_up": _w((lambda *s: torch.randn(*s, dtype=torch.bfloat16) * 0.1)(D, F)),
            "w_down": _w((lambda *s: torch.randn(*s, dtype=torch.bfloat16) * 0.1)(F, D)),
        }
    _B_in = _B_setup()

    return {
        "A_x": _A_in["x"],
        "A_k_cache": _A_in["k_cache"],
        "A_v_cache": _A_in["v_cache"],
        "A_wq": _A_in["wq"],
        "A_wo": _A_in["wo"],
        "B_x": _B_in["x"],
        "B_w_gate": _B_in["w_gate"],
        "B_w_up": _B_in["w_up"],
        "B_w_down": _B_in["w_down"],
    }

def reference(A_x, A_k_cache, A_v_cache, A_wq, A_wo, B_x, B_w_gate, B_w_up, B_w_down):
    def _A_ref(x, k_cache, v_cache, wq, wo):
        B, Sq, D = x.shape
        Hq, Dh = 32, 128
        Hkv, Sk = k_cache.shape[1], k_cache.shape[2]
        W = min(4096, max(256, Sk // 4))
        rep = Hq // Hkv
        q = (lambda x, *d: x.permute(*d))((x @ wq).reshape(B, Sq, Hq, Dh), 0, 2, 1, 3)
        k = (lambda x, n, axis: torch.repeat_interleave(x, n, dim=axis))(k_cache[:, :, Sk - W:, :], rep, axis=1)
        v = (lambda x, n, axis: torch.repeat_interleave(x, n, dim=axis))(v_cache[:, :, Sk - W:, :], rep, axis=1)
        scores = torch.einsum("bhqd,bhkd->bhqk", q, k) * (Dh ** -0.5)
        p = _softmax(scores, axis=-1)
        o = torch.einsum("bhqk,bhkd->bhqd", p, v)
        return (lambda x, *d: x.permute(*d))(o, 0, 2, 1, 3).reshape(B, Sq, Hq * Dh) @ wo

    def _B_ref(x, w_gate, w_up, w_down):
        return (_gelu(x @ w_gate) * (x @ w_up)) @ w_down

    x = A_x
    xn = _layernorm(x, axis=-1)
    s = _A_ref(xn, A_k_cache, A_v_cache, A_wq, A_wo)
    g = _silu(_B_ref(xn, B_w_gate, B_w_up, B_w_down))
    return x + s * g
```

```python
import re

class Asm:
    def __init__(self):
        self.L = []
    def __call__(self, *ss):
        for s in ss:
            if isinstance(s, (list, tuple)):
                self(*s)
            else:
                for ln in s.split("\n"):
                    ln = ln.strip()
                    if ln: self.L.append(ln)
    def text(self):
        out = []
        for l in self.L:
            if l.endswith(":") or l.startswith("."): out.append(l)
            else: out.append("    " + l)
        return "\n".join(out)

def vr(b, n=1, p="v"):
    return f"{p}{b}" if n == 1 else f"{p}[{b}:{b+n-1}]"
def ar(b, n=1): return vr(b, n, "a")
def sr(b, n=1): return vr(b, n, "s")

def mfma(d, a, b, c=None):
    if c is None: c = d
    return f"v_mfma_f32_16x16x32_bf16 {d}, {a}, {b}, {c}"

def weave(mf, gaps):
    out = list(gaps.get(-1, []))
    for i, m in enumerate(mf):
        out.append(m)
        out.extend(gaps.get(i, []))
    return out

def cost(ins):
    op = ins.split()[0]
    if op in ("v_exp_f32", "v_rcp_f32", "v_rsq_f32", "v_sqrt_f32", "v_log_f32") or op.startswith("v_permlane"): return 2
    return 1

def place(gaps, nmf, items, start, cap=2, end=None):
    g = start
    for it in items:
        grp = it if isinstance(it, (list, tuple)) else [it]
        c = sum(cost(x) for x in grp)
        while True:
            used = sum(cost(x) for x in gaps.get(g, []))
            if used + c <= cap or (used == 0) or g >= (nmf - 1 if end is None else end):
                break
            g += 1
        gaps.setdefault(g, []).extend(grp)
    return g

def spread(gaps, items, start, end, cap=2):
    n = len(items)
    if n == 0: return
    span = end - start + 1
    g = start
    for k, it in enumerate(items):
        tgt = max(g, start + (k * span) // n)
        grp = it if isinstance(it, (list, tuple)) else [it]
        c = sum(cost(x) for x in grp)
        g = tgt
        while g < end and sum(cost(x) for x in gaps.get(g, [])) + c > cap and sum(cost(x) for x in gaps.get(g, [])) > 0:
            g += 1
        gaps.setdefault(g, []).extend(grp)

_reg = re.compile(r"\b([vas])(?:(\d+)|\[(\d+):(\d+)\])")
def regs(tok):
    out = set()
    for m in _reg.finditer(tok):
        p = m.group(1)
        if m.group(2) is not None: out.add((p, int(m.group(2))))
        else:
            for i in range(int(m.group(3)), int(m.group(4)) + 1): out.add((p, i))
    if re.search(r"\bvcc\b", tok): out.add(("s", "vcc"))
    if re.search(r"\bm0\b", tok): out.add(("s", "m0"))
    if re.search(r"\bexec\b", tok): out.add(("s", "exec"))
    return out
TRANS = ("v_exp_f32", "v_rcp_f32", "v_rsq_f32", "v_sqrt_f32", "v_log_f32")
def parse(ins):
    op, _, rest = ins.partition(" ")
    ops = [o.strip() for o in rest.split(",")] if rest else []
    d = dict(op=op, w=set(), r=set(), kind="other", srcs=[])
    if op.startswith("v_mfma"):
        d["kind"] = "mfma"; d["w"] = regs(ops[0]); d["a"] = regs(ops[1]) | regs(ops[2]); d["c"] = regs(ops[3]); d["r"] = d["a"] | d["c"]
    elif op.startswith("v_cmp"):
        d["kind"] = "valu"; d["w"] = regs(ops[0]); d["r"] = set().union(*[regs(o) for o in ops[1:]])
    elif op.startswith("v_permlane"):
        d["kind"] = "valu"; d["w"] = regs(ops[0]) | regs(ops[1]); d["r"] = set(d["w"])
    elif op.startswith("v_"):
        d["kind"] = "valu"; d["w"] = regs(ops[0]); d["r"] = set().union(*[regs(o) for o in ops[1:]]) if len(ops) > 1 else set()
        if op.startswith("v_fmac") or op.startswith("v_dot2c"): d["r"] |= d["w"]
        if op.startswith("v_cndmask") and len(ops) == 3: d["r"].add(("s", "vcc"))
        if "_co_" in op: d["w"] |= regs(ops[1])
    elif op.startswith("ds_read"):
        d["kind"] = "ds"; d["w"] = regs(ops[0]); d["r"] = regs(ops[1])
    elif op.startswith("ds_write"):
        d["kind"] = "ds"; d["r"] = set().union(*[regs(o) for o in ops])
    elif op.startswith("buffer_load") or op.startswith("global_load"):
        d["kind"] = "vmem"
        if " lds" in ins:
            d["r"] = set().union(*[regs(o) for o in ops]) | {("s", "m0")}; d["lds"] = True
        else:
            d["w"] = regs(ops[0]); d["r"] = set().union(*[regs(o) for o in ops[1:]])
    elif op.startswith("buffer_store") or op.startswith("global_store"):
        d["kind"] = "vmem"; d["r"] = set().union(*[regs(o) for o in ops]); d["store"] = regs(ops[0]) if op.startswith("buffer") else regs(ops[1])
        d["wide"] = op.endswith("x4") or op.endswith("x3")
    elif op.startswith("buffer_atomic"):
        d["kind"] = "vmem"; d["r"] = set().union(*[regs(o) for o in ops]); d["w"] = regs(ops[0]) if "sc0" in ins else set()
    elif op.startswith("s_"):
        d["kind"] = "salu"
        if op in ("s_waitcnt", "s_barrier", "s_nop", "s_endpgm", "s_setprio", "s_sleep") or op.startswith("s_cbranch") or op == "s_branch":
            pass
        elif op.startswith("s_cmp"):
            d["r"] = set().union(*[regs(o) for o in ops])
        else:
            d["w"] = regs(ops[0]); d["r"] = set().union(*[regs(o) for o in ops[1:]]) if len(ops) > 1 else set()
            if "saveexec" in op: d["w"].add(("s", "exec"))
    return d
def states(ins):
    if ins.startswith("s_nop"): return int(ins.split()[1]) + 1
    return 1
def check_hazards(lines, name=""):
    ins = [l for l in lines if not (l.endswith(":") or l.startswith(".") or l.startswith(";"))]
    P = [parse(l) for l in ins]
    nerr = 0
    def err(i, j, need, what):
        nonlocal nerr
        nerr += 1
        if nerr < 30: print(f"HAZARD[{name}] {what}: need {need}\n   prod: {ins[i]}\n   cons: {ins[j]}")
    for j, c in enumerate(P):
        dist = 0
        for i in range(j - 1, max(-1, j - 25), -1):
            p = P[i]
            vw = {r for r in p["w"] if r[0] in "va"}
            sw = {r for r in p["w"] if r[0] == "s"}
            if p["kind"] == "valu":
                if c["kind"] == "mfma" and vw & c["r"] and dist < 2: err(i, j, 2, "valu->mfma")
                if p["op"] in TRANS and c["kind"] == "valu" and c["op"] not in TRANS and vw & c["r"] and dist < 1: err(i, j, 1, "trans->valu")
                if p["op"] in TRANS and c["kind"] in ("ds", "vmem") and vw & c["r"] and dist < 1: err(i, j, 1, "trans->mem(?)")
                if c["op"].startswith("v_permlane") and vw & c["r"] and dist < 2: err(i, j, 2, "valu->permlane")
                if "dpp" in c["op"] and vw & c["r"] and dist < 2: err(i, j, 2, "valu->dpp")
                if c["op"].startswith("v_read") and vw & c["r"] and dist < 1: err(i, j, 1, "valu->readlane")
                if c["kind"] == "vmem" and sw & c["r"] and dist < 5: err(i, j, 5, "valu sgpr->vmem")
                if c["kind"] == "valu" and sw & c["r"] and dist < 2: err(i, j, 2, "valu sgpr->valu")
                if c["kind"] == "salu" and sw & c["r"] and dist < 1 and ("s","vcc") not in (sw & c["r"]): err(i, j, 1, "valu sgpr->salu (soft)")
            if p["kind"] == "mfma":
                if c["kind"] in ("valu", "ds", "vmem") and (vw & (c["r"] | c["w"])) and dist < 8: err(i, j, 8, "mfma D->valu/mem")
                if c["kind"] == "mfma":
                    if vw & c["a"] and dist < 8: err(i, j, 8, "mfma D->mfma AB")
                    if vw & c["c"] and vw != c["c"] and dist < 6: err(i, j, 6, "mfma D->mfma C overlap")
                    if vw & c["w"] and not (vw & c["c"]) and dist < 6: err(i, j, 6, "mfma D WAW (soft)")
                if c["kind"] == "valu" and (p["c"] & c["w"]) and dist < 3: err(i, j, 3, "mfma C WAR valu")
            if p["kind"] == "salu" and ("s", "m0") in p["w"] and c.get("lds") and dist < 1: err(i, j, 1, "m0->lds dma")
            if p["kind"] == "vmem" and p.get("wide") and c["kind"] == "valu" and (p["store"] & c["w"]) and dist < 2: err(i, j, 2, "store data WAR")
            if p["kind"] == "salu" and ("s", "exec") in p["w"] and False: pass
            dist += states(ins[i])
            if dist >= 20: break
    return nerr

def desc(name, vg, acc, sg=102):
    return f""".p2align 6
.amdhsa_kernel {name}
  .amdhsa_next_free_vgpr {vg}
  .amdhsa_next_free_sgpr {sg}
  .amdhsa_accum_offset {acc}
  .amdhsa_group_segment_fixed_size 0
  .amdhsa_kernarg_size 96
  .amdhsa_user_sgpr_count 2
  .amdhsa_user_sgpr_kernarg_segment_ptr 1
  .amdhsa_system_sgpr_workgroup_id_x 1
.end_amdhsa_kernel"""
```

```python
import sys, struct
from asmlib import *

XF_OFF = 0
OF_OFF = 4 << 20
HF_OFF = 20 << 20
EX_OFF = 36 << 20
FL_OFF = 40 << 20

def f2u(x): return struct.unpack("<I", struct.pack("<f", x))[0]
LOG2E = 1.4426950408889634

def srd(a, d, lo, hi, size):
    if lo != d: a(f"s_mov_b32 s{d}, s{lo}")
    if hi != d + 1: a(f"s_mov_b32 s{d+1}, s{hi}")
    a(f"s_mov_b32 s{d+2}, {size}" if isinstance(size, int) else f"s_mov_b32 s{d+2}, {size}")
    a(f"s_mov_b32 s{d+3}, 0x20000")

def srd_off(a, d, lo, off, size):
    a(f"s_add_u32 s{d}, s{lo}, {off}")
    a(f"s_addc_u32 s{d+1}, s{lo+1}, 0")
    a(f"s_mov_b32 s{d+2}, {size}")
    a(f"s_mov_b32 s{d+3}, 0x20000")

def code_warm(a, name, nwaves, vtmp, vdst, spc, nkb):
    a(f"s_getpc_b64 s[{spc}:{spc+1}]")
    a(f"v_lshlrev_b32 v{vtmp}, 4, v0")
    n = (nkb + nwaves - 1) // nwaves
    for i in range(n):
        a(f"global_load_dwordx4 v[{vdst}:{vdst+3}], v{vtmp}, s[{spc}:{spc+1}]")
        if i + 1 < n: a(f"v_add_u32 v{vtmp}, {1024*nwaves}, v{vtmp}")
    return n

def wave_reduce_add(a, x, t):
    for r in (8, 4, 2, 1):
        a("s_nop 1")
        a(f"v_add_f32_dpp v{x}, v{x}, v{x} row_ror:{r} row_mask:0xf bank_mask:0xf")
    for op in ("v_permlane16_swap_b32", "v_permlane32_swap_b32"):
        a(f"v_mov_b32 v{t}, v{x}")
        a("s_nop 1")
        a(f"{op} v{x}, v{t}")
        a(f"v_add_f32 v{x}, v{x}, v{t}")

def bf16_round(a, x):
    a(f"v_cvt_pk_bf16_f32 v{x}, v{x}, v{x}")
    a(f"v_and_b32 v{x}, 0xffff0000, v{x}")

def gen_ln():
    a = Asm()
    n = "ln_kernel"
    a(f".globl {n}\n.p2align 8\n.type {n},@function\n{n}:")
    a("s_cmp_ge_u32 s2, 256\ns_cbranch_scc1 L_ln_done")
    a("s_load_dwordx2 s[4:5], s[0:1], 0\ns_load_dwordx2 s[6:7], s[0:1], 88")
    a("v_and_b32 v1, 63, v0\nv_lshrrev_b32 v2, 6, v0")
    a("v_lshlrev_b32 v3, 11, v2\nv_lshl_add_u32 v3, v1, 4, v3\ns_lshl_b32 s3, s2, 14")
    a("s_waitcnt lgkmcnt(0)")
    srd(a, 8, 4, 5, 4 << 20)
    a("buffer_load_dwordx4 v[4:7], v3, s[8:11], s3 offen")
    a("buffer_load_dwordx4 v[8:11], v3, s[8:11], s3 offen offset:1024")
    srd(a, 12, 6, 7, 4 << 20)
    srd_off(a, 16, 6, FL_OFF, 512 * 64)
    a("s_lshl_b32 s20, s2, 7\nv_lshlrev_b32 v12, 6, v0\nv_mov_b32 v13, 0")
    a("v_cmp_gt_u32 vcc, 2, v0\ns_and_saveexec_b64 s[22:23], vcc\ns_cbranch_execz L_ln_nf")
    a("buffer_store_dword v13, v12, s[16:19], s20 offen")
    a("L_ln_nf:\ns_mov_b64 exec, s[22:23]")
    a("v_lshrrev_b32 v12, 2, v1\nv_mul_u32_u24 v12, 656, v12")
    a("v_and_b32 v13, 1, v1\nv_mul_u32_u24 v13, 320, v13\nv_add_u32 v12, v12, v13")
    a("v_bfe_u32 v13, v1, 1, 1\nv_lshlrev_b32 v13, 3, v13\nv_add_u32 v12, v12, v13")
    a("v_lshl_add_u32 v12, v2, 4, v12")
    a("v_lshrrev_b32 v13, 5, v0\nv_mul_u32_u24 v14, 656, v13\nv_bfe_u32 v15, v0, 3, 2\nv_mul_u32_u24 v32, 160, v15\nv_add_u32 v14, v14, v32")
    a("v_and_b32 v32, 7, v0\nv_lshl_add_u32 v14, v32, 4, v14")
    a("v_lshlrev_b32 v13, 12, v13\nv_lshl_add_u32 v13, v15, 8, v13\nv_lshl_add_u32 v13, v32, 4, v13")
    a("s_lshr_b32 s20, s2, 3\ns_lshl_b32 s20, s20, 17\ns_bfe_u32 s21, s2, 0x20001\ns_lshl_b32 s21, s21, 10\ns_add_u32 s20, s20, s21")
    a("s_and_b32 s21, s2, 1\ns_lshl_b32 s21, s21, 7\ns_add_u32 s20, s20, s21\ns_add_u32 s21, s20, 65536")
    a("s_waitcnt vmcnt(1)")
    a("s_waitcnt vmcnt(0)")
    for i in range(8):
        a(f"v_lshlrev_b32 v{16+2*i}, 16, v{4+i}\nv_and_b32 v{17+2*i}, 0xffff0000, v{4+i}")
    a("v_pk_add_f32 v[34:35], v[16:17], v[18:19]\nv_pk_add_f32 v[36:37], v[20:21], v[22:23]\nv_pk_add_f32 v[38:39], v[24:25], v[26:27]\nv_pk_add_f32 v[40:41], v[28:29], v[30:31]")
    a("v_pk_add_f32 v[34:35], v[34:35], v[36:37]\nv_pk_add_f32 v[38:39], v[38:39], v[40:41]\nv_pk_add_f32 v[34:35], v[34:35], v[38:39]\nv_add_f32 v34, v34, v35")
    wave_reduce_add(a, 34, 35)
    a(f"v_mul_f32 v34, {hex(f2u(1/1024))}, v34")
    a("v_mov_b32 v36, 0\nv_mov_b32 v37, 0")
    for i in range(16):
        a(f"v_sub_f32 v{40+i}, v{16+i}, v34")
    for i in range(16):
        a(f"v_fmac_f32 v{36+(i&1)}, v{40+i}, v{40+i}")
    a("v_add_f32 v36, v36, v37")
    wave_reduce_add(a, 36, 35)
    a(f"v_mul_f32 v36, {hex(f2u(1/1024))}, v36")
    bf16_round(a, 36)
    a(f"v_add_f32 v36, {hex(f2u(1e-5))}, v36")
    bf16_round(a, 36)
    a("v_sqrt_f32 v36, v36\ns_nop 0")
    bf16_round(a, 36)
    a("v_rcp_f32 v36, v36")
    bf16_round(a, 34)
    for i in range(16):
        a(f"v_sub_f32 v{16+i}, v{16+i}, v34")
    for i in range(8):
        a(f"v_cvt_pk_bf16_f32 v{40+i}, v{16+2*i}, v{17+2*i}")
    for i in range(8):
        a(f"v_lshlrev_b32 v{16+2*i}, 16, v{40+i}\nv_and_b32 v{17+2*i}, 0xffff0000, v{40+i}")
    for i in range(16):
        a(f"v_mul_f32 v{16+i}, v{16+i}, v36")
    for i in range(8):
        a(f"v_cvt_pk_bf16_f32 v{40+i}, v{16+2*i}, v{17+2*i}")
    a("ds_write_b64 v12, v[40:41]\nds_write_b64 v12, v[42:43] offset:160")
    a(f"ds_write_b64 v12, v[44:45] offset:{16*656}\nds_write_b64 v12, v[46:47] offset:{16*656+160}")
    a("s_waitcnt lgkmcnt(0)\ns_barrier")
    a(f"ds_read_b128 v[4:7], v14\nds_read_b128 v[8:11], v14 offset:{16*656}")
    a("s_waitcnt lgkmcnt(1)\nbuffer_store_dwordx4 v[4:7], v13, s[12:15], s20 offen")
    a("s_waitcnt lgkmcnt(0)\nbuffer_store_dwordx4 v[8:11], v13, s[12:15], s21 offen")
    a("L_ln_done:\ns_endpgm")
    return a, desc(n, 64, 64, 32), f"; @launch kernel={n} grid=(256,1,1) block=(512,1,1) lds={32*656}"

SLOT = 45056
GACC = 32
def gacc(m, tau, j): return vr(GACC + ((m * 7 + tau) * 4 + j) * 4, 4)
def gacc_i(m, tau, j): return GACC + ((m * 7 + tau) * 4 + j) * 4
def qacc_i(T, j): return (T * 4 + j) * 4
def xfr(b, ks, j): return ar(128 + 32 * b + (ks * 4 + j) * 4, 4)
def wfr_i(buf, ks): return 192 + 8 * buf + 4 * ks
sWAVE, sRB, sCU, sPAR, sTG = 44, 45, 46, 47, 48
sX0, sX1, sW, sQ0, sQ1 = 50, 51, 52, 53, 54
sWW, sWQ, sDL, sCNT, sSD, sSR = 55, 56, 57, 58, 59, 60
sT = 61
sGC, sSC, sPC = 62, 64, 66
sKo, sVo, sMK, sMV, sT2, sW4 = 68, 69, 70, 71, 72, 73
vL16, vL16P, vOW, vOQ, vG, vG6, vQ, vOK, vOV = 1, 2, 3, 10, 12, 13, 14, 18, 22

def w_reads(i, buf):
    out = []
    for ks in range(2):
        for half in range(2):
            row = 32 * ks + 16 * half
            if i < 14:
                tau, m = i >> 1, i & 1
                if tau < 6: adr, off = vG, m * 14336 + row * 224 + 32 * tau
                else: adr, off = vG6, m * 14336 + row * 224
            else:
                T = i - 14
                adr, off = vQ + (T & 3), (T >> 2) * 8192 + row * 128
            out.append(f"ds_read_b64_tr_b16 {ar(wfr_i(buf, ks) + 2 * half, 2)}, v{adr} offset:{off}")
    return out

def x_loads(b):
    return [f"buffer_load_dwordx4 {xfr(b, ks, j)}, v{vL16}, s[16:19], s{sX0 + ks} offen offset:{j*1024}" for ks in range(2) for j in range(4)]

def w_dmas():
    items = []
    for d in range(7):
        pre = []
        if d == 0: pre = [f"s_add_u32 m0, s{sSD}, s{sWW}"]
        if d == 4: pre = [f"s_add_u32 m0, m0, 4096"]
        items.append((pre, f"buffer_load_dwordx4 v{vOW+d}, s[20:23], s{sW} offen offset:{1024*(d&3)} lds"))
    for hh in range(2):
        for rg in range(2):
            pre = []
            if rg == 0: pre = [f"s_add_u32 m0, s{sSD}, s{sWQ}"] if hh == 0 else ["s_add_u32 m0, m0, 8192"]
            items.append((pre, f"buffer_load_dwordx4 v{vOQ+rg}, s[24:27], s{sQ0+hh} offen offset:{1024*rg} lds"))
    return items

def kv_dmas(kind, soff, m0expr):
    items = []
    for m in range(4):
        pre = [m0expr] if m == 0 else []
        if kind == "K": items.append((pre, f"buffer_load_dwordx4 v{vOK+m}, s[28:31], {soff} offen offset:{1024*m} lds"))
        else: items.append((pre, f"buffer_load_dwordx4 v{vOV+(m&1)}, s[32:35], {soff} offen offset:{1024*m} lds"))
    return items

KBASE, VBASE = 32768, 98304
def kslot(c): return KBASE + ((c + 2) & 3) * 16384
def vslot(c): return VBASE + (c & 3) * 16384
def kv_static(kind, c, stmp):
    base = kslot(c) if kind == "K" else vslot(c)
    it = kv_dmas(kind, f"s{stmp}", f"s_add_u32 m0, s{sW4}, {base}")
    it[0] = ([f"s_add_u32 s{stmp}, s{sW4}, {c*16384}"] + it[0][0], it[0][1])
    return it

def gq_stage(b, mode):
    mf = []
    for i in range(22):
        buf = (22 * b + i) % 4
        for j in range(4):
            for ks in range(2):
                if i < 14: d = gacc(i & 1, i >> 1, j)
                else: d = ar(qacc_i(i - 14, j), 4)
                mf.append(mfma(d, ar(wfr_i(buf, ks), 4), xfr(b, ks, j)))
    G = {}
    def add(g, *x): G.setdefault(g, []).extend(x)
    for i in range(20):
        for k, r in enumerate(w_reads(i + 2, (22 * b + i + 2) % 4)): add(8 * i + k, r)
    vm = []
    if mode in ("normal", "t14"): vm += [([], x) for x in x_loads(b ^ 1)]
    nafter = 0
    if mode == "normal": d = w_dmas()
    elif mode == "t14": d = kv_static("K", 0, sT) + kv_static("K", 3, sT2)
    else: d = kv_static("K", 1, sT) + kv_static("V", 0, sT2) + kv_static("V", 1, sKo)
    nafter = len(d)
    vm += d
    pos = []
    for t in range(4): pos += [8 * t + 5, 8 * t + 7]
    for t in range(4, 20): pos += [8 * t + 5]
    assert len(vm) <= len(pos)
    for (pre, ins), g in zip(vm, pos):
        add(g - 1, *pre)
        add(g, ins)
    if mode == "normal":
        add(8 * 5 + 6, f"s_add_u32 s{sX0}, s{sX0}, 8192", f"s_add_u32 s{sX1}, s{sX1}, 8192")
        add(8 * 19 + 4, f"s_add_u32 s{sW}, s{sW}, {64*7168}", f"s_add_u32 s{sQ0}, s{sQ0}, {64*8192}")
        add(8 * 19 + 5, f"s_add_u32 s{sQ1}, s{sQ1}, {64*8192}", f"s_add_u32 s{sSD}, s{sSD}, {SLOT}")
        add(8 * 19 + 6, f"s_cmp_eq_u32 s{sSD}, {3*SLOT}", f"s_cselect_b32 s{sSD}, 0, s{sSD}")
    if mode != "t15":
        add(8 * 20 + 0, f"s_add_u32 s{sSR}, s{sSR}, {SLOT}", f"s_cmp_eq_u32 s{sSR}, {3*SLOT}")
        add(8 * 20 + 1, f"s_cselect_b32 s{sDL}, {-2*SLOT & 0xffffffff}, {SLOT}" if False else f"s_cselect_b32 s{sDL}, s{sT2+2}, s{sT2+3}", f"s_cselect_b32 s{sSR}, 0, s{sSR}")
    for i in range(1, 21): add(8 * i - 1, "s_waitcnt lgkmcnt(4)")
    if mode == "t15":
        add(8 * 21 - 1, "s_waitcnt lgkmcnt(0)", "s_barrier")
    else:
        add(8 * 21 - 1, f"s_waitcnt vmcnt({nafter}) lgkmcnt(0)", "s_barrier", f"v_add_u32 v{vG}, s{sDL}, v{vG}")
        nb = b ^ 1
        rd = w_reads(0, (22 * nb) % 4) + w_reads(1, (22 * nb + 1) % 4)
        g0 = 8 * 21
        add(g0, rd[0], rd[1]); add(g0 + 1, rd[2], rd[3]); add(g0 + 2, rd[4], rd[5]); add(g0 + 3, rd[6], rd[7])
        add(g0 + 4, f"v_add_u32 v{vG6}, s{sDL}, v{vG6}", f"v_add_u32 v{vQ}, s{sDL}, v{vQ}")
        add(g0 + 5, f"v_add_u32 v{vQ+1}, s{sDL}, v{vQ+1}", f"v_add_u32 v{vQ+2}, s{sDL}, v{vQ+2}")
        add(g0 + 6, f"v_add_u32 v{vQ+3}, s{sDL}, v{vQ+3}")
        add(g0 + 7, "s_waitcnt lgkmcnt(4)")
    return mf, G

SB = (32, 96); PB = (160, 192); NEGM = 224; vK = 240; vV = 244
aQ, aKB, aVB, aL, aONE = 128, 192, 208, 224, 240
def s_i(sb, i, j): return SB[sb] + (i * 4 + j) * 4
def p_i(pb, u, j): return PB[pb] + (u * 4 + j) * 4
def k_reads(i, par, buf):
    return [f"ds_read_b128 {ar(buf + 4*ks, 4)}, v{vK+ks} offset:{32768 + par*16384 + i*4096}" for ks in range(4)]
def v_reads(tp, par, buf):
    out = []
    for tl in range(2):
        for u in range(2):
            for half in range(2):
                out.append(f"ds_read_b64_tr_b16 {ar(buf + tl*8 + u*4 + half*2, 2)}, v{vV + 2*tp + tl} offset:{32768 + par*16384 + (32*u + 16*half)*256}")
    return out
def s_mf(i, sb, buf):
    return [mfma(vr(s_i(sb, i, j), 4), ar(buf + 4*ks, 4), ar(aQ + (j*4 + ks)*4, 4), vr(NEGM + 4*j, 4) if ks == 0 else None) for j in range(4) for ks in range(4)]
def v_mf(tp, pb, buf):
    return [mfma(ar(((2*tp + tl)*4 + j)*4, 4), ar(buf + tl*8 + u*4, 4), vr(p_i(pb, u, j), 4)) for tl in range(2) for j in range(4) for u in range(2)]
def l_mf(pb):
    return [mfma(ar(aL + 4*j, 4), ar(aONE, 4), vr(p_i(pb, u, j), 4)) for j in range(4) for u in range(2)]
def sm_ops(sb, pb):
    out = []
    pend = []
    for i in range(4):
        for j in range(4):
            s = s_i(sb, i, j); p = p_i(pb, i >> 1, j) + 2 * (i & 1)
            e = [f"v_exp_f32 v{s+r}, v{s+r}" for r in range(4)]
            out += e[:2] + pend + e[2:]
            pend = [f"v_cvt_pk_bf16_f32 v{p}, v{s}, v{s+1}", f"v_cvt_pk_bf16_f32 v{p+1}, v{s+2}, v{s+3}"]
    out += ["s_nop 0"] + pend
    return out

def att_block(groups, nxt, fillers, sync, dmas=[], extra_at_sync=[]):
    mf = []; starts = []
    for m, r in groups:
        starts.append(len(mf)); mf += m
    G = {}
    def add(g, *x): G.setdefault(g, []).extend(x)
    syncg, syncins = sync
    ng = len(groups)
    for k in range(ng):
        rd = []
        if k + 1 < ng and groups[k + 1][1]: rd = groups[k + 1][1]
        if k == syncg: rd = rd + extra_at_sync + nxt
        for q in range(0, len(rd), 2): add(starts[k] + q // 2, *rd[q:q + 2])
        if k > 0:
            if k == syncg: add(starts[k] - 1, *syncins)
            elif groups[k][1]: add(starts[k] - 1, "s_waitcnt lgkmcnt(0)")
    g = 6
    for pre, ins in dmas:
        add(g - 1, *pre); add(g, ins); g += 8
    assert g - 8 < starts[syncg] if (dmas and syncg is not None) else True
    spread(G, fillers, 0, len(mf) - 1)
    return weave(mf, G)

def gen_k1(nkb):
    a = Asm()
    n = "gq_attn_kernel"
    a(f".globl {n}\n.p2align 8\n.type {n},@function\n{n}:")
    a("s_cmp_ge_u32 s2, 256\ns_cbranch_scc1 L_k1_done")
    a("s_load_dwordx4 s[4:7], s[0:1], 8\ns_load_dwordx2 s[8:9], s[0:1], 24\ns_load_dwordx4 s[12:15], s[0:1], 48\ns_load_dwordx2 s[10:11], s[0:1], 88")
    ncw = code_warm(a, n, 4, 24, 28, sPC, nkb)
    a(f"v_lshrrev_b32 v24, 6, v0\nv_and_b32 v0, 63, v0")
    a(f"v_readfirstlane_b32 s{sWAVE}, v24")
    a(f"s_lshr_b32 s{sRB}, s2, 5\ns_and_b32 s{sCU}, s2, 7\ns_lshl_b32 s{sCU}, s{sCU}, 2\ns_bfe_u32 s{sT}, s2, 0x20003\ns_add_u32 s{sCU}, s{sCU}, s{sT}")
    a(f"s_and_b32 s{sPAR}, s{sCU}, 1\ns_lshl_b32 s{sTG}, s{sRB}, 2\ns_add_u32 s{sTG}, s{sTG}, s{sWAVE}")
    a(f"v_lshlrev_b32 v{vL16}, 4, v0")
    for d in range(7):
        a(f"v_add_u32 v24, {64*d}, v0\nv_mul_u32_u24 v25, 4682, v24\nv_lshrrev_b32 v25, 16, v25\nv_mul_u32_u24 v26, 14, v25\nv_sub_u32 v26, v24, v26")
        a(f"v_mul_u32_u24 v25, 7168, v25\nv_lshl_add_u32 v{vOW+d}, v26, 4, v25")
        if d & 3: a(f"v_subrev_u32 v{vOW+d}, {1024*(d&3)}, v{vOW+d}")
    a("v_bfe_u32 v24, v0, 1, 2\nv_lshrrev_b32 v25, 4, v0\nv_xor_b32 v24, v24, v25\nv_lshlrev_b32 v24, 5, v24\nv_and_b32 v25, 1, v0\nv_lshl_add_u32 v24, v25, 4, v24")
    a(f"v_lshrrev_b32 v25, 3, v0\nv_lshl_add_u32 v{vOQ}, v25, 13, v24\nv_add_u32 v{vOQ+1}, {8*8192-1024}, v{vOQ}")
    a("s_waitcnt lgkmcnt(0)")
    a(f"s_lshl_b32 s{sT}, s{sTG}, 17")
    srd_off(a, 16, 10, f"s{sT}", 131072)
    a(f"s_and_b32 s{sT}, s{sWAVE}, 1\ns_cmp_eq_u32 s{sT}, 0\ns_cselect_b32 s20, s12, s14\ns_cselect_b32 s21, s13, s15")
    a(f"s_mul_i32 s{sWW}, s{sT}, 14336")
    a(f"s_lshr_b32 s{sT}, s{sWAVE}, 1\ns_mul_i32 s{sT2}, s{sT}, 7168\ns_add_u32 s{sWW}, s{sWW}, s{sT2}")
    a(f"s_mul_i32 s{sT}, s{sT}, {32*7168}\ns_mul_i32 s{sT2}, s{sCU}, 224\ns_add_u32 s{sT}, s{sT}, s{sT2}")
    a(f"s_add_u32 s20, s20, s{sT}\ns_addc_u32 s21, s21, 0\ns_sub_u32 s22, {1024*7168}, s{sT}\ns_mov_b32 s23, 0x20000")
    a(f"s_lshl_b32 s{sT}, s{sWAVE}, 17\ns_lshl_b32 s{sT2}, s{sCU}, 8\ns_add_u32 s{sT}, s{sT}, s{sT2}")
    a(f"s_add_u32 s24, s8, s{sT}\ns_addc_u32 s25, s9, 0\ns_sub_u32 s26, {1024*8192}, s{sT}\ns_mov_b32 s27, 0x20000")
    a(f"s_lshl_b32 s{sWQ}, s{sWAVE}, 11\ns_add_u32 s{sWQ}, s{sWQ}, 28672")
    a(f"s_mov_b32 s{sX0}, 0\ns_mov_b32 s{sX1}, 4096\ns_mov_b32 s{sW}, 0\ns_mov_b32 s{sQ0}, 0\ns_mov_b32 s{sQ1}, 128\ns_mov_b32 s{sSD}, 0")
    def emit_items(items):
        for pre, ins in items:
            a(pre)
            if pre: a("s_nop 0")
            a(ins)
    emit_items(w_dmas())
    a(x_loads(0))
    a(f"s_mov_b32 s{sW}, {64*7168}\ns_mov_b32 s{sQ0}, {64*8192}\ns_mov_b32 s{sQ1}, {64*8192+128}\ns_mov_b32 s{sSD}, {SLOT}")
    emit_items(w_dmas())
    a(f"s_mov_b32 s{sW}, {2*64*7168}\ns_mov_b32 s{sQ0}, {2*64*8192}\ns_mov_b32 s{sQ1}, {2*64*8192+128}\ns_mov_b32 s{sSD}, {2*SLOT}")
    a(f"s_mov_b32 s{sX0}, 8192\ns_mov_b32 s{sX1}, {8192+4096}\ns_mov_b32 s{sSR}, 0\ns_mov_b32 s{sCNT}, 7")
    a(f"s_mov_b32 s{sT2+2}, {(-2*SLOT) & 0xffffffff}\ns_mov_b32 s{sT2+3}, {SLOT}")
    a(f"v_lshrrev_b32 v24, 2, v0\nv_and_b32 v25, 3, v0\nv_lshlrev_b32 v25, 3, v25\nv_mul_u32_u24 v26, 224, v24\nv_add_u32 v26, v26, v25")
    a(f"s_lshl_b32 s{sT}, s{sPAR}, 5\nv_add_u32 v{vG}, s{sT}, v26\ns_cmp_eq_u32 s{sPAR}, 0\ns_cselect_b32 s{sT}, 192, 0\nv_add_u32 v{vG6}, s{sT}, v26")
    a(f"v_lshl_add_u32 v26, v24, 7, v25\nv_add_u32 v26, 28672, v26\nv_bfe_u32 v27, v0, 3, 2")
    for s in range(4):
        a(f"v_xor_b32 v24, {s}, v27\nv_lshl_add_u32 v{vQ+s}, v24, 5, v26")
    a(f"s_lshl_b32 s{sT}, s{sPAR}, 3\nv_add_u32 v{vL16P}, s{sT}, v{vL16}")
    a("v_lshrrev_b32 v24, 4, v0\nv_and_b32 v25, 15, v0\nv_lshlrev_b32 v26, 8, v24")
    for m in range(4):
        a(f"v_add_u32 v27, {4*m}, v24\nv_xor_b32 v27, v27, v25\nv_lshl_add_u32 v{vOK+m}, v27, 4, v26")
    a("v_and_b32 v27, 1, v0\nv_lshl_add_u32 v26, v27, 4, v26\nv_lshrrev_b32 v25, 1, v25")
    for e in range(2):
        a(f"v_add_u32 v27, {4*e}, v24\nv_xor_b32 v27, v27, v25\nv_lshl_add_u32 v{vOV+e}, v27, 5, v26")
    a(f"s_lshr_b32 s{sT}, s{sCU}, 3\ns_lshl_b32 s{sT}, s{sT}, 19\ns_add_u32 s{sT}, s{sT}, {1536*256}")
    srd_off(a, 28, 4, f"s{sT}", 131072)
    srd_off(a, 32, 6, f"s{sT}", 131072)
    a(f"s_lshl_b32 s{sW4}, s{sWAVE}, 12")
    a(f"s_mul_i32 s{sT}, s{sTG}, 458752\ns_lshr_b32 s{sT2}, s{sCU}, 1\ns_mul_i32 s{sT2}, s{sT2}, {7*4096}\ns_add_u32 s{sT}, s{sT}, s{sT2}\ns_add_u32 s{sT}, s{sT}, {HF_OFF}")
    srd_off(a, 36, 10, f"s{sT}", 7 * 4096)
    a(f"s_lshl_b32 s{sT}, s{sTG}, 19\ns_lshl_b32 s{sT2}, s{sCU}, 14\ns_add_u32 s{sT}, s{sT}, s{sT2}\ns_add_u32 s{sT}, s{sT}, {OF_OFF}")
    srd_off(a, 40, 10, f"s{sT}", 16384)
    K0 = -2 * 0.7978845608028654 * LOG2E
    a(f"s_mov_b32 s{sGC}, {hex(f2u(K0*0.044715))}\ns_mov_b32 s{sGC+1}, {hex(f2u(K0))}")
    sc = (128 ** -0.5) * LOG2E
    a(f"s_mov_b32 s{sSC}, {hex(f2u(sc))}\ns_mov_b32 s{sSC+1}, {hex(f2u(sc))}")
    for i in range(GACC, 256): a(f"v_mov_b32 v{i}, 0")
    for i in range(128): a(f"v_accvgpr_write_b32 a{i}, 0")
    a("s_waitcnt vmcnt(11)\ns_barrier")
    a(w_reads(0, 0) + w_reads(1, 1))
    a("s_waitcnt lgkmcnt(4)")
    a(".p2align 6\nL_gq_loop:")
    mf, G = gq_stage(0, "normal"); a(weave(mf, G))
    mf, G = gq_stage(1, "normal")
    G.setdefault(174, []).extend([f"s_sub_u32 s{sCNT}, s{sCNT}, 1", f"s_cmp_lg_u32 s{sCNT}, 0"])
    a(weave(mf, G))
    a("s_cbranch_scc1 L_gq_loop")
    mf, G = gq_stage(0, "t14"); a(weave(mf, G))
    mf, G = gq_stage(1, "t15"); a(weave(mf, G))
    emit_items(kv_static("K", 2, sT) + kv_static("V", 2, sT2))
    a(f"s_mul_i32 s{sT}, s{sPAR}, {4*4096}\ns_add_u32 s{sT2}, s{sT}, 4096\ns_add_u32 s{sKo}, s{sT}, 8192\ns_mov_b32 s{sVo}, {3*4096}")
    TMP = [4, 6, 8, 10, 12, 14, 16, 24]
    def gelu_group(tiles):
        prs = []
        for (g, u, dst) in tiles:
            prs += [(g, u, dst), (g + 2, u + 2, dst + 1)]
        P = [(g, u, dst, TMP[k]) for k, (g, u, dst) in enumerate(prs)]
        for g, u, dst, t in P: a(f"v_pk_mul_f32 {vr(t,2)}, {vr(g,2)}, {vr(g,2)}")
        for g, u, dst, t in P: a(f"v_pk_fma_f32 {vr(t,2)}, {vr(t,2)}, s[{sGC}:{sGC+1}], s[{sGC}:{sGC+1}] op_sel:[0,0,1] op_sel_hi:[1,0,1]")
        for g, u, dst, t in P: a(f"v_pk_mul_f32 {vr(t,2)}, {vr(t,2)}, {vr(g,2)}")
        for g, u, dst, t in P: a(f"v_exp_f32 v{t}, v{t}\nv_exp_f32 v{t+1}, v{t+1}")
        for g, u, dst, t in P: a(f"v_pk_mul_f32 {vr(u,2)}, {vr(u,2)}, {vr(g,2)}")
        for g, u, dst, t in P: a(f"v_pk_add_f32 {vr(t,2)}, {vr(t,2)}, 1.0 op_sel_hi:[1,0]")
        for g, u, dst, t in P: a(f"v_rcp_f32 v{t}, v{t}\nv_rcp_f32 v{t+1}, v{t+1}")
        a("s_nop 0")
        for g, u, dst, t in P: a(f"v_pk_mul_f32 {vr(u,2)}, {vr(u,2)}, {vr(t,2)}")
        for g, u, dst, t in P: a(f"v_cvt_pk_bf16_f32 v{dst}, v{u}, v{u+1}")
    a("s_nop 7")
    soffs = [sT, sT2, sKo]
    for p in range(3):
        for jj in range(2):
            tl = []
            for j in (2 * jj, 2 * jj + 1):
                d = gacc_i(0, 2 * p, j)
                tl += [(gacc_i(0, 2 * p, j), gacc_i(1, 2 * p, j), d), (gacc_i(0, 2 * p + 1, j), gacc_i(1, 2 * p + 1, j), d + 2)]
            gelu_group(tl)
            for j in (2 * jj, 2 * jj + 1):
                a(f"buffer_store_dwordx4 {vr(gacc_i(0, 2*p, j), 4)}, v{vL16}, s[36:39], s{soffs[p]} offen offset:{j*1024}")
    gelu_group([(gacc_i(0, 6, j), gacc_i(1, 6, j), gacc_i(0, 6, j)) for j in range(4)])
    for j in range(4):
        a(f"buffer_store_dwordx2 {vr(gacc_i(0, 6, j), 2)}, v{vL16P}, s[36:39], s{sVo} offen offset:{j*1024}")
    for t in range(4):
        B = 64
        for j in range(4):
            for r in range(4):
                a(f"v_accvgpr_read_b32 v{B + j*8 + r}, a{qacc_i(2*t, j) + r}")
            for r in range(4):
                a(f"v_accvgpr_read_b32 v{B + j*8 + 4 + r}, a{qacc_i(2*t+1, j) + r}")
        for q in range(16): a(f"v_pk_mul_f32 {vr(B+2*q,2)}, {vr(B+2*q,2)}, s[{sSC}:{sSC+1}]")
        for q in range(16): a(f"v_cvt_pk_bf16_f32 v{B+32+q}, v{B+2*q}, v{B+2*q+1}")
        for j in range(4):
            for r in range(2): a(f"v_permlane32_swap_b32 v{B+32+4*j+r}, v{B+32+4*j+2+r}")
        for j in range(4):
            for r in range(2): a(f"v_permlane16_swap_b32 v{B+32+4*j+r}, v{B+32+4*j+2+r}")
        for j in range(4):
            for r in range(4): a(f"v_accvgpr_write_b32 a{aQ + (j*4 + t)*4 + r}, v{B+32+4*j+r}")
    a("v_and_b32 v24, 15, v0\nv_lshrrev_b32 v25, 4, v0\nv_lshlrev_b32 v26, 8, v24\nv_add_u32 v26, 32768, v26")
    for ks in range(4):
        a(f"v_add_u32 v27, {4*ks}, v25\nv_xor_b32 v27, v27, v24\nv_lshl_add_u32 v{vK+ks}, v27, 4, v26")
    a("v_lshrrev_b32 v24, 2, v0\nv_and_b32 v25, 3, v0\nv_lshlrev_b32 v25, 3, v25\nv_lshl_add_u32 v25, v24, 8, v25\nv_add_u32 v25, 65536, v25\nv_and_b32 v24, 7, v24")
    for T in range(8):
        a(f"v_xor_b32 v27, {T}, v24\nv_lshl_add_u32 v{vV+T}, v27, 5, v25")
    for i in range(16): a(f"v_mov_b32 v{NEGM+i}, 0")
    a("v_mov_b32 v24, 0x3f803f80")
    for i in range(4): a(f"v_accvgpr_write_b32 a{aONE+i}, v24")
    a(f"s_add_u32 s{sKo}, s{sW4}, {4*16384}\ns_add_u32 s{sVo}, s{sW4}, {3*16384}")
    a(f"s_mov_b32 s{sMK}, {kslot(4)-KBASE}\ns_mov_b32 s{sMV}, {vslot(3)-VBASE}")
    a(f"s_add_u32 s{sT2+2}, s{sW4}, {KBASE}\ns_add_u32 s{sT2+3}, s{sW4}, {VBASE}\ns_mov_b32 s{sCNT}, 3")
    a("s_waitcnt vmcnt(0)\ns_barrier")
    a(k_reads(0, 0, aKB))
    a("s_waitcnt lgkmcnt(0)")
    zero = [f"v_accvgpr_write_b32 a{i}, 0" for i in list(range(128)) + list(range(aL, aL + 16))]
    bufs = (aKB, aVB)
    grp = [(s_mf(i, 0, bufs[i & 1]), k_reads(i, 0, bufs[i & 1])) for i in range(4)]
    a(att_block(grp, k_reads(0, 1, aKB), zero[:104], (3, ["s_waitcnt lgkmcnt(0)"])))
    a(zero[104:])
    a("s_waitcnt lgkmcnt(0)")
    togK = [f"v_xor_b32 v{vK+k}, 0x8000, v{vK+k}" for k in range(4)]
    togV = [f"v_xor_b32 v{vV+k}, 0x8000, v{vV+k}" for k in range(8)]
    grp = [(s_mf(i, 1, bufs[i & 1]), k_reads(i, 1, bufs[i & 1])) for i in range(4)]
    a(att_block(grp, k_reads(0, 0, aKB), sm_ops(0, 0), (3, ["s_waitcnt lgkmcnt(0)", "s_barrier"]), extra_at_sync=togK))
    a("s_waitcnt lgkmcnt(0)")
    a(".p2align 6\nL_att_loop:")
    for par in range(2):
        sb, pb = par, par
        grp = []
        for i in range(4):
            grp.append((s_mf(i, sb, aKB), k_reads(i, par, aKB)))
            grp.append((v_mf(i, pb, aVB), v_reads(i, par, aVB)))
        grp.append((l_mf(pb), []))
        dm = kv_dmas("K", f"s{sKo}", f"s_add_u32 m0, s{sMK}, s{sT2+2}") + kv_dmas("V", f"s{sVo}", f"s_add_u32 m0, s{sMV}, s{sT2+3}")
        upd = [f"s_add_u32 s{sKo}, s{sKo}, 16384", f"s_add_u32 s{sVo}, s{sVo}, 16384", f"s_add_u32 s{sMK}, s{sMK}, 16384", f"s_and_b32 s{sMK}, s{sMK}, 0xffff",
               f"s_add_u32 s{sMV}, s{sMV}, 16384", f"s_and_b32 s{sMV}, s{sMV}, 0xffff"]
        ext = (togK if par == 1 else [])
        nxt = k_reads(0, par ^ 1, aKB) + (togV if par == 1 else []) + upd
        if par == 1: nxt = nxt + [f"s_sub_u32 s{sCNT}, s{sCNT}, 1", f"s_cmp_lg_u32 s{sCNT}, 0"]
        a(att_block(grp, nxt, sm_ops(sb ^ 1, pb ^ 1), (7, ["s_waitcnt vmcnt(8) lgkmcnt(0)", "s_barrier"]), dmas=dm, extra_at_sync=ext))
        a("s_waitcnt lgkmcnt(0)")
    a("s_cbranch_scc1 L_att_loop")
    vb = (aVB, aKB)
    grp = [(l_mf(0), [])] + [(v_mf(i, 0, vb[i & 1]), v_reads(i, 0, vb[i & 1])) for i in range(4)]
    a(att_block(grp, v_reads(0, 1, aVB), sm_ops(1, 1), (4, ["s_waitcnt lgkmcnt(0)"])))
    a("s_waitcnt lgkmcnt(0)\ns_nop 1")
    grp = [(v_mf(i, 1, vb[i & 1]), v_reads(i, 1, vb[i & 1])) for i in range(4)] + [(l_mf(1), [])]
    grp = [(l_mf(1) + v_mf(0, 1, vb[0]), v_reads(0, 1, vb[0]))] + grp[1:4]
    a(att_block(grp, [], [], (None, [])))
    for j in range(4): a(f"v_accvgpr_read_b32 v{4+2*j}, a{aL+4*j}")
    for j in range(4): a(f"v_rcp_f32 v{4+2*j}, v{4+2*j}")
    a(f"s_mov_b32 s{sT}, 4096\ns_mov_b32 s{sT2}, 8192\ns_mov_b32 s{sKo}, 12288\ns_nop 4")
    so = ["0", f"s{sT}", f"s{sT2}", f"s{sKo}"]
    for t in range(4):
        B = 32 + 48 * t
        for j in range(4):
            for tl in range(2):
                for r in range(4): a(f"v_accvgpr_read_b32 v{B + j*8 + tl*4 + r}, a{((2*t+tl)*4 + j)*4 + r}")
        for j in range(4):
            for q in range(4): a(f"v_pk_mul_f32 {vr(B+j*8+2*q,2)}, {vr(B+j*8+2*q,2)}, {vr(4+2*j,2)} op_sel_hi:[1,0]")
        for q in range(16): a(f"v_cvt_pk_bf16_f32 v{B+32+q}, v{B+2*q}, v{B+2*q+1}")
        for j in range(4): a(f"buffer_store_dwordx4 {vr(B+32+4*j,4)}, v{vL16}, s[40:43], {so[t]} offen offset:{j*1024}")
    a("L_k1_done:\ns_endpgm")
    return a, desc(n, 512, 256), f"; @launch kernel={n} grid=(256,1,1) block=(256,1,1) lds=163840"

def gen_k2(nkb):
    a = Asm()
    n = "out_kernel"
    ACC = 128
    def acc_i(T, j): return ACC + (T * 4 + j) * 4
    def afr(q, ks, j): return ar(32 * q + (ks * 4 + j) * 4, 4)
    def wf(buf, ks): return 128 + 8 * buf + 4 * ks
    sWV, sTY, sTB, sNB, sTH, sKH = 44, 45, 46, 47, 48, 49
    sA0, sA1, sB0, sB1, sMB, sCN, sU, sU2, sU3, sPC2 = 50, 51, 52, 53, 54, 55, 56, 57, 58, 60
    vL, vOB, vW, vXR, vTW, vTR = 1, 2, 6, 14, 15, 16
    XV = 64
    def rds(T, q, buf):
        out = []
        for ks in range(2):
            for half in range(2):
                out.append(f"ds_read_b64_tr_b16 {ar(wf(buf, ks) + 2*half, 2)}, v{vW + (q>>1)*4 + (T&3)} offset:{(q&1)*32768 + (T>>2)*8192 + (32*ks+16*half)*128}")
        return out
    def loads(q):
        it = [([], f"buffer_load_dwordx4 {afr(q, ks, j)}, v{vL}, s[16:19], s{sA0+ks} offen offset:{j*1024}") for ks in range(2) for j in range(4)]
        dm = []
        for hh in range(2):
            for rg in range(4):
                pre = [f"s_add_u32 m0, s{sMB}, {q*32768 + hh*8192}"] if rg == 0 else []
                dm.append((pre, f"buffer_load_dwordx4 v{vOB+rg}, s[20:23], s{sB0+hh} offen offset:{1024*rg} lds"))
        return dm + it
    upd = [f"s_add_u32 s{sA0}, s{sA0}, 8192", f"s_add_u32 s{sA1}, s{sA1}, 8192", f"s_add_u32 s{sB0}, s{sB0}, 131072", f"s_add_u32 s{sB1}, s{sB1}, 131072"]
    def emit_items(items):
        for pre, ins in items:
            a(pre)
            if pre: a("s_nop 0")
            a(ins)
    a(f".globl {n}\n.p2align 8\n.type {n},@function\n{n}:")
    a("s_cmp_ge_u32 s2, 256\ns_cbranch_scc1 L_k2_done")
    a("s_load_dwordx2 s[4:5], s[0:1], 0\ns_load_dwordx2 s[6:7], s[0:1], 32\ns_load_dwordx4 s[8:11], s[0:1], 64\ns_load_dwordx2 s[12:13], s[0:1], 88")
    ncw = code_warm(a, n, 4, 24, 28, sPC2, nkb)
    a(f"v_lshrrev_b32 v24, 6, v0\nv_and_b32 v0, 63, v0")
    a(f"v_readfirstlane_b32 s{sWV}, v24")
    a(f"s_bfe_u32 s{sTY}, s2, 0x10002")
    a(f"s_and_b32 s{sTB}, s2, 1\ns_lshl_b32 s{sTB}, s{sTB}, 3\ns_bfe_u32 s{sU}, s2, 0x30003\ns_add_u32 s{sTB}, s{sTB}, s{sU}")
    a(f"s_bfe_u32 s{sNB}, s2, 0x10001\ns_lshl_b32 s{sNB}, s{sNB}, 2\ns_lshr_b32 s{sU}, s2, 6\ns_add_u32 s{sNB}, s{sNB}, s{sU}")
    a(f"s_and_b32 s{sTH}, s{sWV}, 1\ns_lshr_b32 s{sKH}, s{sWV}, 1")
    a(f"v_lshlrev_b32 v{vL}, 4, v0")
    a("v_bfe_u32 v24, v0, 1, 2\nv_lshrrev_b32 v25, 4, v0\nv_xor_b32 v24, v24, v25\nv_lshlrev_b32 v24, 5, v24\nv_and_b32 v26, 1, v0\nv_lshl_add_u32 v24, v26, 4, v24")
    a(f"v_lshrrev_b32 v26, 3, v0\nv_lshl_add_u32 v{vOB}, v26, 11, v24")
    for rg in range(1, 4): a(f"v_add_u32 v{vOB+rg}, {rg*(16384-1024)}, v{vOB}")
    a("v_and_b32 v26, 15, v0\nv_lshlrev_b32 v27, 11, v25")
    for m in range(4):
        a(f"v_add_u32 v24, {4*m}, v25\nv_xor_b32 v24, v24, v26\nv_lshl_add_u32 v{16+m}, v24, 4, v27")
        if m: a(f"v_add_u32 v{16+m}, {m*(8192-1024)}, v{16+m}")
    a(f"s_lshl_b32 s{sU}, s{sTB}, 7\ns_lshl_b32 s{sU2}, s{sTH}, 6\ns_add_u32 s{sU}, s{sU}, s{sU2}\ns_lshl_b32 s{sU2}, s{sKH}, 5\ns_add_u32 s{sU}, s{sU}, s{sU2}")
    a(f"s_lshl_b32 s{sU}, s{sU}, 11\ns_lshl_b32 s{sU2}, s{sNB}, 8\ns_add_u32 s{sU}, s{sU}, s{sU2}")
    a("s_waitcnt lgkmcnt(0)")
    srd_off(a, 24, 4, f"s{sU}", 31 * 2048 + 256)
    srd_off(a, 28, 10, f"s{sU}", 31 * 2048 + 256)
    a(f"s_lshl_b32 s{sU}, s{sTB}, 1\ns_add_u32 s{sU}, s{sU}, s{sTH}")
    a(f"s_mov_b32 s{sU2}, 458752\ns_mov_b32 s{sU3}, {HF_OFF}\ns_cmp_eq_u32 s{sTY}, 0\ns_cmov_b32 s{sU2}, 524288\ns_cmov_b32 s{sU3}, {OF_OFF}\ns_cselect_b32 s20, s6, s8\ns_cselect_b32 s21, s7, s9\ns_cselect_b32 s{sCN}, 8, 7")
    a(f"s_mul_i32 s{sU}, s{sU}, s{sU2}\ns_add_u32 s{sU}, s{sU}, s{sU3}\ns_lshr_b32 s{sU2}, s{sU2}, 1\ns_mul_i32 s{sU3}, s{sU2}, s{sKH}\ns_add_u32 s{sU}, s{sU}, s{sU3}")
    srd_off(a, 16, 12, f"s{sU}", f"s{sU2}")
    a(f"s_lshl_b32 s{sU2}, s{sU2}, 4\ns_mul_i32 s{sU}, s{sU2}, s{sKH}\ns_lshl_b32 s{sU3}, s{sTH}, 16\ns_sub_u32 s22, s{sU2}, s{sU3}\ns_add_u32 s{sU}, s{sU}, s{sU3}")
    a(f"s_lshl_b32 s{sU3}, s{sNB}, 8\ns_add_u32 s{sU}, s{sU}, s{sU3}\ns_sub_u32 s22, s22, s{sU3}\ns_add_u32 s20, s20, s{sU}\ns_addc_u32 s21, s21, 0\ns_mov_b32 s23, 0x20000")
    a(f"s_lshl_b32 s{sMB}, s{sKH}, 14\ns_lshl_b32 s{sU}, s{sTH}, 12\ns_add_u32 s{sMB}, s{sMB}, s{sU}")
    a(f"s_mov_b32 s{sA0}, 0\ns_mov_b32 s{sA1}, 4096\ns_mov_b32 s{sB0}, 0\ns_mov_b32 s{sB1}, 128")
    emit_items(loads(0)); a(upd)
    a(f"s_lshl_b32 s{sU}, s{sWV}, 13\ns_add_u32 s{sU}, s{sU}, 131072\ns_mov_b32 s{sU2}, 32768")
    for hf in range(2):
        a(f"s_add_u32 m0, s{sU}, {hf*4096}\ns_nop 0")
        for m in range(4):
            a(f"buffer_load_dwordx4 v{16+m}, s[24:27], {'0' if hf == 0 else 's%d' % sU2} offen offset:{1024*m} lds")
    emit_items(loads(1)); a(upd)
    emit_items(loads(2)); a(upd)
    a(f"s_lshl_b32 s{sU2}, s{sTB}, 3\ns_add_u32 s{sU2}, s{sU2}, s{sNB}\ns_lshl_b32 s{sU2}, s{sU2}, 2\ns_add_u32 s{sU2}, s{sU2}, s{sWV}")
    a(f"s_lshl_b32 s{sU3}, s{sU2}, 13\ns_add_u32 s{sU3}, s{sU3}, {EX_OFF}")
    srd_off(a, 32, 12, f"s{sU3}", 8192)
    a(f"s_lshl_b32 s{sU3}, s{sU2}, 6\ns_add_u32 s{sU3}, s{sU3}, {FL_OFF}")
    srd_off(a, 36, 12, f"s{sU3}", 64)
    a(f"v_lshrrev_b32 v24, 2, v0\nv_and_b32 v25, 3, v0\nv_lshlrev_b32 v25, 3, v25\nv_lshl_add_u32 v26, v24, 7, v25\ns_lshl_b32 s{sU3}, s{sKH}, 14\nv_add_u32 v26, s{sU3}, v26\nv_bfe_u32 v27, v0, 3, 2")
    for s in range(4):
        a(f"v_xor_b32 v24, {s}, v27\nv_lshl_add_u32 v{vW+s}, v24, 5, v26\nv_add_u32 v{vW+4+s}, 65536, v{vW+s}")
    a(f"v_and_b32 v24, 15, v0\nv_lshlrev_b32 v25, 8, v24\nv_bfe_u32 v26, v0, 4, 1\nv_lshl_add_u32 v25, v26, 3, v25\nv_add_u32 v25, s{sU}, v25\nv_lshrrev_b32 v26, 5, v0\nv_xor_b32 v24, v24, v26")
    for T in range(8):
        a(f"v_xor_b32 v26, {2*T}, v24\nv_lshl_add_u32 v{32+T}, v26, 4, v25")
    a(f"s_mul_i32 s{sU3}, s{sWV}, 9216\ns_add_u32 s{sU3}, s{sU3}, 65536")
    a(f"v_and_b32 v24, 15, v0\nv_lshrrev_b32 v25, 4, v0\nv_mul_u32_u24 v26, 272, v24\nv_lshl_add_u32 v26, v25, 3, v26\nv_add_u32 v{vTW}, s{sU3}, v26")
    a(f"v_mul_u32_u24 v26, 272, v25\nv_lshl_add_u32 v26, v24, 4, v26\nv_add_u32 v{vTR}, s{sU3}, v26")
    a(f"v_lshlrev_b32 v26, 11, v25\nv_lshl_add_u32 v{vXR}, v24, 4, v26")
    for i in range(ACC, 256): a(f"v_mov_b32 v{i}, 0")
    a("s_waitcnt vmcnt(32)")
    for jp in range(2):
        for T in range(8):
            a(f"ds_read_b64 {vr(40 + 2*T, 2)}, v{32+T} offset:{jp*4096}")
        a("s_waitcnt lgkmcnt(0)")
        for T in range(8):
            d = XV + (jp * 8 + T) * 4
            for r in range(2):
                a(f"v_lshlrev_b32 v{d+2*r}, 16, v{40+2*T+r}\nv_and_b32 v{d+2*r+1}, 0xffff0000, v{40+2*T+r}")
    a("s_barrier")
    a(rds(0, 0, 0) + rds(1, 0, 1))
    a("s_waitcnt lgkmcnt(4)")
    a(".p2align 6\nL_k2_loop:")
    for q in range(4):
        mf = [mfma(vr(acc_i(T, j), 4), ar(wf(T % 4, ks), 4), afr(q, ks, j)) for T in range(8) for j in range(4) for ks in range(2)]
        G = {}
        def add(g, *x): G.setdefault(g, []).extend(x)
        for T in range(6):
            for k, r in enumerate(rds(T + 2, q, (T + 2) % 4)): add(8 * T + k, r)
        vm = loads((q + 3) % 4)
        pos = []
        for T in range(6): pos += [8 * T + 3, 8 * T + 5, 8 * T + 7]
        for (pre, ins), g in zip(vm, pos):
            add(g - 1, *pre); add(g, ins)
        add(48, upd[0], upd[1]); add(49, upd[2], upd[3])
        for T in range(1, 7): add(8 * T - 1, "s_waitcnt lgkmcnt(4)")
        add(55, "s_waitcnt vmcnt(32) lgkmcnt(0)", "s_barrier")
        rd = rds(0, (q + 1) % 4, 0) + rds(1, (q + 1) % 4, 1)
        for k in range(4): add(56 + k, rd[2 * k], rd[2 * k + 1])
        if q == 3: add(61, f"s_sub_u32 s{sCN}, s{sCN}, 1", f"s_cmp_lg_u32 s{sCN}, 0")
        add(63, "s_waitcnt lgkmcnt(4)")
        a(weave(mf, G))
    a("s_cbranch_scc1 L_k2_loop")
    a("v_mov_b32 v20, 1\nv_mov_b32 v21, 0\ns_mov_b64 exec, 1")
    a("buffer_atomic_add v20, v21, s[36:39], 0 offen sc0")
    a("s_mov_b64 exec, -1")
    a("s_waitcnt vmcnt(0) lgkmcnt(0)\ns_barrier")
    a(f"v_readfirstlane_b32 s{sU}, v20")
    a(f"s_lshl_b32 s{sU2}, s{sWV}, 14\nv_add_u32 v22, s{sU2}, v{vL}\ns_xor_b32 s{sU2}, s{sU2}, 0x8000\nv_add_u32 v23, s{sU2}, v{vL}")
    a(f"s_cmp_eq_u32 s{sKH}, 0\ns_cbranch_scc0 L_k2_kh1")
    for kh in range(2):
        if kh == 1: a("L_k2_kh1:")
        for jp in range(2):
            for T in range(8):
                a(f"ds_write_b128 v22, {vr(acc_i(T, 2*(1-kh) + jp), 4)} offset:{(jp*8+T)*1024}")
        a("s_waitcnt lgkmcnt(0)\ns_barrier")
        for jp in range(2):
            for T in range(8):
                a(f"ds_read_b128 {vr(acc_i(T, 2*(1-kh) + jp), 4)}, v23 offset:{(jp*8+T)*1024}")
        k = 0
        for jp in range(2):
            for T in range(8):
                a(f"s_waitcnt lgkmcnt({15-k})"); k += 1
                for h in range(2):
                    a(f"v_pk_add_f32 {vr(acc_i(T, jp) + 2*h, 2)}, {vr(acc_i(T, jp) + 2*h, 2)}, {vr(acc_i(T, 2 + jp) + 2*h, 2)}")
        if kh == 0: a("s_branch L_k2_red")
    a("L_k2_red:")
    R = [acc_i(T, jp) for jp in range(2) for T in range(8)]
    TM = [acc_i(T, 2 + jp) for jp in range(2) for T in range(8)]
    a(f"s_cmp_eq_u32 s{sTY}, 0\ns_cbranch_scc1 L_k2_nosilu")
    a(f"s_mov_b32 s{sU2}, {hex(f2u(-LOG2E))}\ns_mov_b32 s{sU3}, {hex(f2u(-LOG2E))}") if False else None
    a(f"s_mov_b32 s62, {hex(f2u(-LOG2E))}\ns_mov_b32 s63, {hex(f2u(-LOG2E))}")
    for blk in range(4):
        idx = range(4 * blk, 4 * blk + 4)
        for k in idx:
            for h in range(2): a(f"v_pk_mul_f32 {vr(TM[k]+2*h,2)}, {vr(R[k]+2*h,2)}, s[62:63]")
        for k in idx:
            for r in range(4): a(f"v_exp_f32 v{TM[k]+r}, v{TM[k]+r}")
        a("s_nop 0")
        for k in idx:
            for h in range(2): a(f"v_pk_add_f32 {vr(TM[k]+2*h,2)}, {vr(TM[k]+2*h,2)}, 1.0 op_sel_hi:[1,0]")
        for k in idx:
            for r in range(4): a(f"v_rcp_f32 v{TM[k]+r}, v{TM[k]+r}")
        a("s_nop 0")
        for k in idx:
            for h in range(2): a(f"v_pk_mul_f32 {vr(R[k]+2*h,2)}, {vr(R[k]+2*h,2)}, {vr(TM[k]+2*h,2)}")
    a("L_k2_nosilu:")
    a(f"s_mov_b32 s{sU2}, 4096")
    a(f"s_cmp_eq_u32 s{sU}, 0\ns_cbranch_scc0 L_k2_second")
    for k in range(16):
        for h in range(2): a(f"v_cvt_pk_bf16_f32 v{32 + 2*k + h}, v{R[k]+2*h}, v{R[k]+2*h+1}")
    for q in range(8):
        a(f"buffer_store_dwordx4 {vr(32 + 4*q, 4)}, v{vL}, s[32:35], {'0' if q < 4 else 's%d' % sU2} offen offset:{(q&3)*1024} sc0 sc1")
    a("s_waitcnt vmcnt(0)\nv_mov_b32 v20, 0x100\ns_mov_b64 exec, 1")
    a("buffer_atomic_add v20, v21, s[36:39], 0 offen")
    a("s_endpgm")
    a("L_k2_second:")
    a(f"s_cmp_ge_u32 s{sU}, 0x100\ns_cbranch_scc1 L_k2_go")
    a("s_mov_b64 exec, 1")
    a("L_k2_poll:\nv_mov_b32 v20, 0\ns_sleep 2\nbuffer_atomic_add v20, v21, s[36:39], 0 offen sc0\ns_waitcnt vmcnt(0)")
    a(f"v_readfirstlane_b32 s{sU}, v20\ns_nop 3\ns_cmp_ge_u32 s{sU}, 0x100\ns_cbranch_scc0 L_k2_poll")
    a("s_mov_b64 exec, -1")
    a("L_k2_go:")
    for q in range(8):
        a(f"buffer_load_dwordx4 {vr(32 + 4*q, 4)}, v{vL}, s[32:35], {'0' if q < 4 else 's%d' % sU2} offen offset:{(q&3)*1024} sc0 sc1")
    for q in range(8):
        a(f"s_waitcnt vmcnt({7-q})")
        for kk in range(2):
            k = 2 * q + kk
            for h in range(2):
                a(f"v_lshlrev_b32 v{TM[k]+2*h}, 16, v{32+2*k+h}\nv_and_b32 v{TM[k]+2*h+1}, 0xffff0000, v{32+2*k+h}")
        for kk in range(2):
            k = 2 * q + kk
            for h in range(2):
                a(f"v_pk_fma_f32 {vr(R[k]+2*h,2)}, {vr(R[k]+2*h,2)}, {vr(TM[k]+2*h,2)}, {vr(XV+4*k+2*h,2)}")
        for kk in range(2):
            k = 2 * q + kk
            for h in range(2): a(f"v_cvt_pk_bf16_f32 v{TM[k]+h}, v{R[k]+2*h}, v{R[k]+2*h+1}")
        for kk in range(2):
            k = 2 * q + kk
            jp, T = k >> 3, k & 7
            a(f"ds_write_b64 v{vTW}, {vr(TM[k],2)} offset:{jp*16*272 + T*32}")
    a("s_waitcnt lgkmcnt(0)")
    for q in range(8): a(f"ds_read_b128 {vr(32+4*q,4)}, v{vTR} offset:{q*4*272}")
    for q in range(8):
        a(f"s_mov_b32 s{sU2}, {q*8192}\ns_waitcnt lgkmcnt({7-q})")
        a(f"buffer_store_dwordx4 {vr(32+4*q,4)}, v{vXR}, s[28:31], s{sU2} offen")
    a("L_k2_done:\ns_endpgm")
    return a, desc(n, 416, 256), f"; @launch kernel={n} grid=(256,1,1) block=(256,1,1) lds=163840"

def build(fn, k1kb=44, k2kb=16):
    ks = [gen_ln(), gen_k1(k1kb), gen_k2(k2kb)]
    for k, nm in zip(ks, ("ln", "k1", "k2")):
        ne = check_hazards(k[0].L, nm)
        print(nm, "instrs", len(k[0].L), "hazards", ne)
    hdr = open("recurrent_scan__sliding_block_cached__geglu_ffn__prompt.s.ref").read().split("; Override launch")[0]
    out = [hdr.rstrip()]
    out += [k[2] for k in ks]
    out.append('.amdgcn_target "amdgcn-amd-amdhsa--gfx950"\n.text')
    order = [1, 2, 0]
    for i in order: out.append(ks[i][0].text())
    out.append(".p2align 8\n.fill 1024, 4, 0xbf800000")
    out.append('.section .rodata,"a"')
    for k in ks: out.append(k[1])
    open(fn, "w").write("\n".join(out) + "\n")

if __name__ == "__main__":
    build(sys.argv[1] if len(sys.argv) > 1 else "k.s")
```

```python
import sys, struct
from asmlib import *

XF_OFF = 0
OF_OFF = 4 << 20
HF_OFF = 20 << 20
EX_OFF = 36 << 20
FL_OFF = 44 << 20
CNT_REL = 512 * 64

ST_OFF = 48 << 20
STAMP = False
OPT = {}
class Stamper:
    def __init__(self, a, kidx, wsreg):
        self.a = a; self.k = kidx; self.n = 0; self.ws = wsreg
    def __call__(self, real=False):
        if not STAMP: return
        r = 76 + 2 * self.n
        assert r + 1 <= 101, "too many stamps"
        self.a(f"s_memrealtime s[{r}:{r+1}]" if real else f"s_memtime s[{r}:{r+1}]")
        self.n += 1
    def flush(self, swave, vt):
        if not STAMP: return
        a = self.a
        self(); self(True)
        a("s_waitcnt lgkmcnt(0)")
        a(f"s_lshl_b32 s3, s2, 3\ns_add_u32 s3, s3, s{swave}\ns_lshl_b32 s3, s3, 6\ns_add_u32 s3, s3, {ST_OFF + self.k * 256 * 8 * 64}")
        a(f"s_add_u32 s4, s{self.ws}, s3\ns_addc_u32 s5, s{self.ws+1}, 0\ns_mov_b32 s6, 64\ns_mov_b32 s7, 0x20000")
        a(f"s_mov_b64 exec, 1\nv_mov_b32 v{vt+4}, 0")
        for q in range(0, self.n, 4):
            for r in range(4):
                a(f"v_mov_b32 v{vt+r}, s{76 + 2*min(q + r, self.n - 1)}")
            a(f"buffer_store_dwordx4 v[{vt}:{vt+3}], v{vt+4}, s[4:7], 0 offen offset:{q*4}\ns_nop 1")

def f2u(x): return struct.unpack("<I", struct.pack("<f", x))[0]
LOG2E = 1.4426950408889634

def srd(a, d, lo, hi, size):
    if lo != d: a(f"s_mov_b32 s{d}, s{lo}")
    if hi != d + 1: a(f"s_mov_b32 s{d+1}, s{hi}")
    a(f"s_mov_b32 s{d+2}, {size}" if isinstance(size, int) else f"s_mov_b32 s{d+2}, {size}")
    a(f"s_mov_b32 s{d+3}, 0x20000")

def srd_off(a, d, lo, off, size):
    a(f"s_add_u32 s{d}, s{lo}, {off}")
    a(f"s_addc_u32 s{d+1}, s{lo+1}, 0")
    a(f"s_mov_b32 s{d+2}, {size}")
    a(f"s_mov_b32 s{d+3}, 0x20000")

def code_warm(a, name, nwaves, vtmp, vdst, spc, nkb):
    a(f"s_getpc_b64 s[{spc}:{spc+1}]")
    a(f"v_lshlrev_b32 v{vtmp}, 4, v0")
    n = (nkb + nwaves - 1) // nwaves
    for i in range(n):
        a(f"global_load_dwordx4 v[{vdst}:{vdst+3}], v{vtmp}, s[{spc}:{spc+1}]")
        if i + 1 < n: a(f"v_add_u32 v{vtmp}, {1024*nwaves}, v{vtmp}")
    return n

def wave_reduce_add(a, x, t):
    for r in (8, 4, 2, 1):
        a("s_nop 1")
        a(f"v_add_f32_dpp v{x}, v{x}, v{x} row_ror:{r} row_mask:0xf bank_mask:0xf")
    for op in ("v_permlane16_swap_b32", "v_permlane32_swap_b32"):
        a(f"v_mov_b32 v{t}, v{x}")
        a("s_nop 1")
        a(f"{op} v{x}, v{t}")
        a(f"v_add_f32 v{x}, v{x}, v{t}")

def bf16_round(a, x):
    a(f"v_cvt_pk_bf16_f32 v{x}, v{x}, v{x}")
    a(f"v_and_b32 v{x}, 0xffff0000, v{x}")

def gen_ln():
    a = Asm()
    n = "ln_kernel"
    a(f".globl {n}\n.p2align 8\n.type {n},@function\n{n}:")
    a("s_cmp_ge_u32 s2, 256\ns_cbranch_scc1 L_ln_done")
    st = Stamper(a, 0, 24); st(True); st()
    a("s_load_dwordx2 s[4:5], s[0:1], 0\ns_load_dwordx2 s[6:7], s[0:1], 88")
    a("s_load_dwordx2 s[28:29], s[0:1], 24\ns_load_dwordx2 s[32:33], s[0:1], 48\ns_load_dwordx2 s[36:37], s[0:1], 56")
    a("v_and_b32 v1, 63, v0\nv_lshrrev_b32 v2, 6, v0")
    a("v_lshlrev_b32 v3, 11, v2\nv_lshl_add_u32 v3, v1, 4, v3\ns_lshl_b32 s3, s2, 14")
    a("s_waitcnt lgkmcnt(0)")
    srd(a, 8, 4, 5, 4 << 20)
    a("buffer_load_dwordx4 v[4:7], v3, s[8:11], s3 offen")
    a("buffer_load_dwordx4 v[8:11], v3, s[8:11], s3 offen offset:1024")
    a(f"s_mov_b32 s30, {128*8192}\ns_mov_b32 s31, 0x20000\ns_mov_b32 s34, {128*7168}\ns_mov_b32 s35, 0x20000\ns_mov_b32 s38, {128*7168}\ns_mov_b32 s39, 0x20000")
    a("v_lshrrev_b32 v12, 4, v0\nv_lshlrev_b32 v12, 7, v12\nv_and_b32 v13, 15, v0\nv_lshl_add_u32 v12, v13, 2, v12\ns_lshl_b32 s20, s2, 12")
    a("buffer_load_dword v60, v12, s[28:31], s20 offen\nbuffer_load_dword v61, v12, s[32:35], s20 offen\nbuffer_load_dword v62, v12, s[36:39], s20 offen")
    srd(a, 12, 6, 7, 4 << 20)
    srd_off(a, 16, 6, FL_OFF, CNT_REL + 16 * 256)
    a(f"s_lshl_b32 s20, s2, 7\nv_lshlrev_b32 v12, 6, v0\nv_add_u32 v12, s20, v12\ns_lshl_b32 s20, s2, 8\ns_add_u32 s20, s20, {CNT_REL}\nv_mov_b32 v13, s20")
    a("v_cmp_eq_u32 vcc, 2, v0\ns_nop 1\nv_cndmask_b32 v12, v12, v13, vcc\nv_mov_b32 v13, 0")
    a("v_cmp_gt_u32 vcc, 3, v0\ns_and_saveexec_b64 s[22:23], vcc\ns_cbranch_execz L_ln_nf")
    a("buffer_store_dword v13, v12, s[16:19], 0 offen")
    a("L_ln_nf:\ns_mov_b64 exec, s[22:23]")
    a("v_lshrrev_b32 v12, 2, v1\nv_mul_u32_u24 v12, 656, v12")
    a("v_and_b32 v13, 1, v1\nv_mul_u32_u24 v13, 320, v13\nv_add_u32 v12, v12, v13")
    a("v_bfe_u32 v13, v1, 1, 1\nv_lshlrev_b32 v13, 3, v13\nv_add_u32 v12, v12, v13")
    a("v_lshl_add_u32 v12, v2, 4, v12")
    a("v_lshrrev_b32 v13, 5, v0\nv_mul_u32_u24 v14, 656, v13\nv_bfe_u32 v15, v0, 3, 2\nv_mul_u32_u24 v32, 160, v15\nv_add_u32 v14, v14, v32")
    a("v_and_b32 v32, 7, v0\nv_lshl_add_u32 v14, v32, 4, v14")
    a("v_lshlrev_b32 v13, 12, v13\nv_lshl_add_u32 v13, v15, 8, v13\nv_lshl_add_u32 v13, v32, 4, v13")
    a("s_lshr_b32 s20, s2, 3\ns_lshl_b32 s20, s20, 17\ns_bfe_u32 s21, s2, 0x20001\ns_lshl_b32 s21, s21, 10\ns_add_u32 s20, s20, s21")
    a("s_and_b32 s21, s2, 1\ns_lshl_b32 s21, s21, 7\ns_add_u32 s20, s20, s21\ns_add_u32 s21, s20, 65536")
    a("s_waitcnt vmcnt(3)")
    for i in range(8):
        a(f"v_lshlrev_b32 v{16+2*i}, 16, v{4+i}\nv_and_b32 v{17+2*i}, 0xffff0000, v{4+i}")
    a("v_pk_add_f32 v[34:35], v[16:17], v[18:19]\nv_pk_add_f32 v[36:37], v[20:21], v[22:23]\nv_pk_add_f32 v[38:39], v[24:25], v[26:27]\nv_pk_add_f32 v[40:41], v[28:29], v[30:31]")
    a("v_pk_add_f32 v[34:35], v[34:35], v[36:37]\nv_pk_add_f32 v[38:39], v[38:39], v[40:41]\nv_pk_add_f32 v[34:35], v[34:35], v[38:39]\nv_add_f32 v34, v34, v35")
    wave_reduce_add(a, 34, 35)
    a(f"v_mul_f32 v34, {hex(f2u(1/1024))}, v34")
    a("v_mov_b32 v36, 0\nv_mov_b32 v37, 0")
    for i in range(16):
        a(f"v_sub_f32 v{40+i}, v{16+i}, v34")
    for i in range(16):
        a(f"v_fmac_f32 v{36+(i&1)}, v{40+i}, v{40+i}")
    a("v_add_f32 v36, v36, v37")
    wave_reduce_add(a, 36, 35)
    a(f"v_mul_f32 v36, {hex(f2u(1/1024))}, v36")
    bf16_round(a, 36)
    a(f"v_add_f32 v36, {hex(f2u(1e-5))}, v36")
    bf16_round(a, 36)
    a("v_sqrt_f32 v36, v36\ns_nop 0")
    bf16_round(a, 36)
    a("v_rcp_f32 v36, v36")
    bf16_round(a, 34)
    for i in range(16):
        a(f"v_sub_f32 v{16+i}, v{16+i}, v34")
    for i in range(8):
        a(f"v_cvt_pk_bf16_f32 v{40+i}, v{16+2*i}, v{17+2*i}")
    for i in range(8):
        a(f"v_lshlrev_b32 v{16+2*i}, 16, v{40+i}\nv_and_b32 v{17+2*i}, 0xffff0000, v{40+i}")
    for i in range(16):
        a(f"v_mul_f32 v{16+i}, v{16+i}, v36")
    for i in range(8):
        a(f"v_cvt_pk_bf16_f32 v{40+i}, v{16+2*i}, v{17+2*i}")
    a("ds_write_b64 v12, v[40:41]\nds_write_b64 v12, v[42:43] offset:160")
    a(f"ds_write_b64 v12, v[44:45] offset:{16*656}\nds_write_b64 v12, v[46:47] offset:{16*656+160}")
    a("s_waitcnt lgkmcnt(0)\ns_barrier")
    a(f"ds_read_b128 v[4:7], v14\nds_read_b128 v[8:11], v14 offset:{16*656}")
    a("s_waitcnt lgkmcnt(1)\nbuffer_store_dwordx4 v[4:7], v13, s[12:15], s20 offen")
    a("s_waitcnt lgkmcnt(0)\nbuffer_store_dwordx4 v[8:11], v13, s[12:15], s21 offen")
    if STAMP:
        a("s_mov_b32 s24, s6\ns_mov_b32 s25, s7\nv_readfirstlane_b32 s26, v2\ns_waitcnt vmcnt(0)")
    st.flush(26, 56)
    a("L_ln_done:\ns_endpgm")
    return a, desc(n, 64, 64, 102 if STAMP else 40), f"; @launch kernel={n} grid=(256,1,1) block=(512,1,1) lds={32*656}"

SLOT = 45056
GACC = 32
def gacc(m, tau, j): return vr(GACC + ((m * 7 + tau) * 4 + j) * 4, 4)
def gacc_i(m, tau, j): return GACC + ((m * 7 + tau) * 4 + j) * 4
def qacc_i(T, j): return (T * 4 + j) * 4
def xfr(b, ks, j): return ar(128 + 32 * b + (ks * 4 + j) * 4, 4)
def wfr_i(buf, ks): return 192 + 8 * buf + 4 * ks
sWAVE, sRB, sCU, sPAR, sTG = 44, 45, 46, 47, 48
sX0, sX1, sW, sQ0, sQ1 = 50, 51, 52, 53, 54
sWW, sWQ, sDL, sCNT, sSD, sSR = 55, 56, 57, 58, 59, 60
sT = 61
sGC, sSC, sPC = 62, 64, 66
sKo, sVo, sMK, sMV, sT2, sW4 = 68, 69, 70, 71, 72, 73
sPF, vPF = 49, 24
vL16, vL16P, vOW, vOQ, vG, vG6, vQ, vOK, vOV = 1, 2, 3, 10, 12, 13, 14, 18, 22

def w_reads(i, buf):
    out = []
    for ks in range(2):
        for half in range(2):
            row = 32 * ks + 16 * half
            if i < 14:
                tau, m = i >> 1, i & 1
                if tau < 6: adr, off = vG, m * 14336 + row * 224 + 32 * tau
                else: adr, off = vG6, m * 14336 + row * 224
            else:
                T = i - 14
                adr, off = vQ + (T & 3), (T >> 2) * 8192 + row * 128
            out.append(f"ds_read_b64_tr_b16 {ar(wfr_i(buf, ks) + 2 * half, 2)}, v{adr} offset:{off}")
    return out

def x_loads(b):
    return [f"buffer_load_dwordx4 {xfr(b, ks, j)}, v{vL16}, s[16:19], s{sX0 + ks} offen offset:{j*1024}" for ks in range(2) for j in range(4)]

def w_dmas():
    items = []
    for d in range(7):
        pre = []
        if d == 0: pre = [f"s_add_u32 m0, s{sSD}, s{sWW}"]
        if d == 4: pre = [f"s_add_u32 m0, m0, 4096"]
        items.append((pre, f"buffer_load_dwordx4 v{vOW+d}, s[20:23], s{sW} offen offset:{1024*(d&3)} lds"))
    for hh in range(2):
        for rg in range(2):
            pre = []
            if rg == 0: pre = [f"s_add_u32 m0, s{sSD}, s{sWQ}"] if hh == 0 else ["s_add_u32 m0, m0, 8192"]
            items.append((pre, f"buffer_load_dwordx4 v{vOQ+rg}, s[24:27], s{sQ0+hh} offen offset:{1024*rg} lds"))
    return items

def kv_dmas(kind, soff, m0expr):
    items = []
    for m in range(4):
        pre = [m0expr] if m == 0 else []
        if kind == "K": items.append((pre, f"buffer_load_dwordx4 v{vOK+m}, s[28:31], {soff} offen offset:{1024*m} lds"))
        else: items.append((pre, f"buffer_load_dwordx4 v{vOV+(m&1)}, s[32:35], {soff} offen offset:{1024*m} lds"))
    return items

KBASE, VBASE = 32768, 98304
def kslot(c): return KBASE + ((c + 2) & 3) * 16384
def vslot(c): return VBASE + (c & 3) * 16384
def kv_static(kind, c, stmp):
    base = kslot(c) if kind == "K" else vslot(c)
    it = kv_dmas(kind, f"s{stmp}", f"s_add_u32 m0, s{sW4}, {base}")
    it[0] = ([f"s_add_u32 s{stmp}, s{sW4}, {c*16384}"] + it[0][0], it[0][1])
    return it

def gq_stage(b, mode):
    mf = []
    for i in range(22):
        buf = (22 * b + i) % 4
        for j in range(4):
            for ks in range(2):
                if i < 14: d = gacc(i & 1, i >> 1, j)
                else: d = ar(qacc_i(i - 14, j), 4)
                mf.append(mfma(d, ar(wfr_i(buf, ks), 4), xfr(b, ks, j)))
    G = {}
    def add(g, *x): G.setdefault(g, []).extend(x)
    for i in range(20):
        for k, r in enumerate(w_reads(i + 2, (22 * b + i + 2) % 4)): add(8 * i + k, r)
    vm = []
    if mode in ("normal", "t14"): vm += [([], x) for x in x_loads(b ^ 1)]
    nafter = 0
    if mode == "normal": d = w_dmas() + [([], f"buffer_load_dword v31, v{vPF}, s[{28+4*b}:{31+4*b}], s{sPF} offen")]
    elif mode == "t14": d = kv_static("K", 0, sT) + kv_static("K", 3, sT2)
    else: d = kv_static("K", 1, sT) + kv_static("V", 0, sT2) + kv_static("V", 1, sKo)
    nafter = len(d)
    vm += d
    pos = []
    for t in range(4): pos += [8 * t + 5, 8 * t + 7]
    for t in range(4, 20): pos += [8 * t + 5]
    assert len(vm) <= len(pos)
    for (pre, ins), g in zip(vm, pos):
        add(g - 1, *pre)
        add(g, ins)
    if mode == "normal":
        add(8 * 5 + 6, f"s_add_u32 s{sX0}, s{sX0}, 8192", f"s_add_u32 s{sX1}, s{sX1}, 8192")
        if b == 1: add(8 * 18 + 6, f"s_add_u32 s{sPF}, s{sPF}, {2<<20}")
        add(8 * 19 + 4, f"s_add_u32 s{sW}, s{sW}, {64*7168}", f"s_add_u32 s{sQ0}, s{sQ0}, {64*8192}")
        add(8 * 19 + 5, f"s_add_u32 s{sQ1}, s{sQ1}, {64*8192}", f"s_add_u32 s{sSD}, s{sSD}, {SLOT}")
        add(8 * 19 + 6, f"s_cmp_eq_u32 s{sSD}, {3*SLOT}", f"s_cselect_b32 s{sSD}, 0, s{sSD}")
    if mode != "t15":
        add(8 * 20 + 0, f"s_add_u32 s{sSR}, s{sSR}, {SLOT}", f"s_cmp_eq_u32 s{sSR}, {3*SLOT}")
        add(8 * 20 + 1, f"s_cselect_b32 s{sDL}, {-2*SLOT & 0xffffffff}, {SLOT}" if False else f"s_cselect_b32 s{sDL}, s{sT2+2}, s{sT2+3}", f"s_cselect_b32 s{sSR}, 0, s{sSR}")
    for i in range(1, 21): add(8 * i - 1, "s_waitcnt lgkmcnt(4)")
    if mode == "t15":
        add(8 * 21 - 1, "s_waitcnt lgkmcnt(0)", "s_barrier")
    else:
        add(8 * 21 - 1, f"s_waitcnt vmcnt({nafter}) lgkmcnt(0)", "s_barrier", f"v_add_u32 v{vG}, s{sDL}, v{vG}")
        nb = b ^ 1
        rd = w_reads(0, (22 * nb) % 4) + w_reads(1, (22 * nb + 1) % 4)
        g0 = 8 * 21
        add(g0, rd[0], rd[1]); add(g0 + 1, rd[2], rd[3]); add(g0 + 2, rd[4], rd[5]); add(g0 + 3, rd[6], rd[7])
        add(g0 + 4, f"v_add_u32 v{vG6}, s{sDL}, v{vG6}", f"v_add_u32 v{vQ}, s{sDL}, v{vQ}")
        add(g0 + 5, f"v_add_u32 v{vQ+1}, s{sDL}, v{vQ+1}", f"v_add_u32 v{vQ+2}, s{sDL}, v{vQ+2}")
        add(g0 + 6, f"v_add_u32 v{vQ+3}, s{sDL}, v{vQ+3}")
        add(g0 + 7, "s_waitcnt lgkmcnt(4)")
    return mf, G

SB = (32, 96); PB = (160, 192); NEGM = 224; vK = 240; vV = 244
aQ, aKB, aVB, aL, aONE = 128, 192, 208, 224, 240
def s_i(sb, i, j): return SB[sb] + (i * 4 + j) * 4
def p_i(pb, u, j): return PB[pb] + (u * 4 + j) * 4
def k_reads(i, par, buf):
    return [f"ds_read_b128 {ar(buf + 4*ks, 4)}, v{vK+ks} offset:{32768 + par*16384 + i*4096}" for ks in range(4)]
def v_reads(tp, par, buf):
    out = []
    for tl in range(2):
        for u in range(2):
            for half in range(2):
                out.append(f"ds_read_b64_tr_b16 {ar(buf + tl*8 + u*4 + half*2, 2)}, v{vV + 2*tp + tl} offset:{32768 + par*16384 + (32*u + 16*half)*256}")
    return out
def s_mf(i, sb, buf):
    return [mfma(vr(s_i(sb, i, j), 4), ar(buf + 4*ks, 4), ar(aQ + (j*4 + ks)*4, 4), vr(NEGM + 4*j, 4) if ks == 0 else None) for j in range(4) for ks in range(4)]
def v_mf(tp, pb, buf):
    return [mfma(ar(((2*tp + tl)*4 + j)*4, 4), ar(buf + tl*8 + u*4, 4), vr(p_i(pb, u, j), 4)) for tl in range(2) for j in range(4) for u in range(2)]
def l_mf(pb):
    return [mfma(ar(aL + 4*j, 4), ar(aONE, 4), vr(p_i(pb, u, j), 4)) for j in range(4) for u in range(2)]
def sm_ops(sb, pb):
    out = []
    pend = []
    for i in range(4):
        for j in range(4):
            s = s_i(sb, i, j); p = p_i(pb, i >> 1, j) + 2 * (i & 1)
            e = [f"v_exp_f32 v{s+r}, v{s+r}" for r in range(4)]
            out += e[:2] + pend + e[2:]
            pend = [f"v_cvt_pk_bf16_f32 v{p}, v{s}, v{s+1}", f"v_cvt_pk_bf16_f32 v{p+1}, v{s+2}, v{s+3}"]
    out += ["s_nop 0"] + pend
    return out

def att_block(groups, nxt, fillers, sync, dmas=[], extra_at_sync=[], dstep=8):
    mf = []; starts = []
    for m, r in groups:
        starts.append(len(mf)); mf += m
    G = {}
    def add(g, *x): G.setdefault(g, []).extend(x)
    syncg, syncins = sync
    ng = len(groups)
    for k in range(ng):
        rd = []
        if k + 1 < ng and groups[k + 1][1]: rd = groups[k + 1][1]
        if k == syncg: rd = rd + extra_at_sync + nxt
        for q in range(0, len(rd), 2): add(starts[k] + q // 2, *rd[q:q + 2])
        if k > 0:
            if k == syncg: add(starts[k] - 1, *syncins)
            elif groups[k][1]: add(starts[k] - 1, "s_waitcnt lgkmcnt(0)")
    g = 6
    for pre, ins in dmas:
        add(g - 1, *pre); add(g, *ins.split("\n")); g += dstep
    assert g - dstep < len(mf)
    spread(G, fillers, 0, len(mf) - 1)
    return weave(mf, G)


ACC = 128
def acc_i(T, j): return ACC + (T * 4 + j) * 4
def afr(q, ks, j): return ar(32 * q + (ks * 4 + j) * 4, 4)
def wf(buf, ks): return 128 + 8 * buf + 4 * ks
sTY, sTB, sNB, sTH, sKH, sA0, sA1, sB0, sB1, sMB, sCN, sU, sU2, sU3 = 49, 50, 51, 52, 53, 54, 55, 56, 57, 59, 60, 62, 63, 64
vOB, vW, vXR, vTW, vTR = 4, 8, 16, 17, 3
XV = 64
def p3_rds(T, q, buf):
    return [f"ds_read_b64_tr_b16 {ar(wf(buf, ks) + 2*half, 2)}, v{vW + (q>>1)*4 + (T&3)} offset:{(q&1)*32768 + (T>>2)*8192 + (32*ks+16*half)*128}"
            for ks in range(2) for half in range(2)]
def p3_act(q):
    fl = " sc1" if OPT.get("actsc1", 1) else ""
    return [([], f"buffer_load_dwordx4 {afr(q, ks, j)}, v{vL16}, s[16:19], s{sA0+ks} offen offset:{j*1024}{fl}") for ks in range(2) for j in range(4)]
def p3_dma(q):
    dm = []
    for hh in range(2):
        for rg in range(4):
            pre = [f"s_add_u32 m0, s{sMB}, {q*32768 + hh*8192}"] if rg == 0 else []
            dm.append((pre, f"buffer_load_dwordx4 v{vOB+rg}, s[20:23], s{sB0+hh} offen offset:{1024*rg} lds"))
    return dm
updA = [f"s_add_u32 s{sA0}, s{sA0}, 8192", f"s_add_u32 s{sA1}, s{sA1}, 8192"]
updB = [f"s_add_u32 s{sB0}, s{sB0}, 131072", f"s_add_u32 s{sB1}, s{sB1}, 131072"]

def gen_main(nkb):
    a = Asm()
    n = "main_kernel"
    WT = " sc1"
    def emit_items(items):
        for pre, ins in items:
            a(pre)
            if pre: a("s_nop 0")
            a(ins)
    a(f".globl {n}\n.p2align 8\n.type {n},@function\n{n}:")
    a("s_cmp_ge_u32 s2, 256\ns_cbranch_scc1 L_done")
    st = Stamper(a, 1, 10); st(True); st()
    a("s_load_dwordx2 s[10:11], s[0:1], 88\ns_load_dwordx2 s[8:9], s[0:1], 24\ns_load_dwordx4 s[12:15], s[0:1], 48\ns_load_dwordx4 s[4:7], s[0:1], 8")
    a("s_load_dwordx2 s[28:29], s[0:1], 32\ns_load_dwordx2 s[32:33], s[0:1], 64")
    a(f"v_lshrrev_b32 v24, 6, v0\nv_lshlrev_b32 v26, 4, v0\nv_and_b32 v0, 63, v0")
    a(f"v_readfirstlane_b32 s{sWAVE}, v24")
    a(f"s_lshr_b32 s{sRB}, s2, 5\ns_and_b32 s{sCU}, s2, 7\ns_lshl_b32 s{sCU}, s{sCU}, 2\ns_bfe_u32 s{sT}, s2, 0x20003\ns_add_u32 s{sCU}, s{sCU}, s{sT}")
    a(f"s_and_b32 s{sPAR}, s{sCU}, 1\ns_lshl_b32 s{sTG}, s{sRB}, 2\ns_add_u32 s{sTG}, s{sTG}, s{sWAVE}")
    a(f"v_lshlrev_b32 v{vL16}, 4, v0")
    a("v_bfe_u32 v24, v0, 1, 2\nv_lshrrev_b32 v25, 4, v0\nv_xor_b32 v24, v24, v25\nv_lshlrev_b32 v24, 5, v24\nv_and_b32 v25, 1, v0\nv_lshl_add_u32 v24, v25, 4, v24")
    a(f"v_lshrrev_b32 v25, 3, v0\nv_lshl_add_u32 v{vOQ}, v25, 13, v24\nv_add_u32 v{vOQ+1}, {8*8192-1024}, v{vOQ}")
    a(f"s_lshl_b32 s{sWQ}, s{sWAVE}, 11\ns_add_u32 s{sWQ}, s{sWQ}, 28672")
    a(f"s_mov_b32 s{sX0}, 0\ns_mov_b32 s{sX1}, 4096\ns_mov_b32 s{sW}, 0\ns_mov_b32 s{sQ0}, 0\ns_mov_b32 s{sQ1}, 128\ns_mov_b32 s{sSD}, 0")
    a(f"s_lshl_b32 s{sT}, s{sTG}, 17\ns_lshl_b32 s{sKo}, s{sWAVE}, 17\ns_lshl_b32 s{sT2}, s{sCU}, 8\ns_add_u32 s{sKo}, s{sKo}, s{sT2}")
    a("s_waitcnt lgkmcnt(0)")
    srd_off(a, 16, 10, f"s{sT}", 131072)
    a(f"s_add_u32 s24, s8, s{sKo}\ns_addc_u32 s25, s9, 0\ns_sub_u32 s26, {1024*8192}, s{sKo}\ns_mov_b32 s27, 0x20000")
    wd0 = w_dmas()
    emit_items(wd0[7:])
    a(x_loads(0))
    for d in range(7):
        a(f"v_add_u32 v24, {64*d}, v0\nv_mul_u32_u24 v25, 4682, v24\nv_lshrrev_b32 v25, 16, v25\nv_mul_u32_u24 v27, {7168-14*16}, v25\nv_lshl_add_u32 v{vOW+d}, v24, 4, v27")
        if d & 3: a(f"v_subrev_u32 v{vOW+d}, {1024*(d&3)}, v{vOW+d}")
    a(f"s_and_b32 s{sT}, s{sWAVE}, 1\ns_cmp_eq_u32 s{sT}, 0\ns_cselect_b32 s20, s12, s14\ns_cselect_b32 s21, s13, s15")
    a(f"s_mul_i32 s{sWW}, s{sT}, 14336")
    a(f"s_lshr_b32 s{sT}, s{sWAVE}, 1\ns_mul_i32 s{sT2}, s{sT}, 7168\ns_add_u32 s{sWW}, s{sWW}, s{sT2}")
    a(f"s_mul_i32 s{sT}, s{sT}, {32*7168}\ns_mul_i32 s{sT2}, s{sCU}, 224\ns_add_u32 s{sT}, s{sT}, s{sT2}")
    a(f"s_add_u32 s20, s20, s{sT}\ns_addc_u32 s21, s21, 0\ns_sub_u32 s22, {1024*7168}, s{sT}\ns_mov_b32 s23, 0x20000")
    emit_items(wd0[:7])
    a(f"s_getpc_b64 s[{sPC}:{sPC+1}]")
    ncw = (nkb + 3) // 4
    for i in range(ncw):
        a(f"global_load_dword v28, v26, s[{sPC}:{sPC+1}]") if False else a(f"global_load_dwordx4 v[28:31], v26, s[{sPC}:{sPC+1}]")
        if i + 1 < ncw: a(f"v_add_u32 v26, 4096, v26")
    for i in range(4): a(f"v_mov_b32 v{20+i}, 0")
    a(f"v_lshrrev_b32 v24, 2, v0\nv_and_b32 v25, 3, v0\nv_lshlrev_b32 v25, 3, v25\nv_mul_u32_u24 v26, 224, v24\nv_add_u32 v26, v26, v25")
    zm = [f"v_mfma_f32_32x32x16_bf16 {vr(GACC + 16*i, 16)}, v[20:23], v[20:23], 0" for i in range(14)] + [f"v_mfma_f32_32x32x16_bf16 {ar(16*i, 16)}, v[20:23], v[20:23], 0" for i in range(8)]
    rest = Asm()
    b = rest
    b(f"s_lshl_b32 s{sT}, s{sPAR}, 5\nv_add_u32 v{vG}, s{sT}, v26\ns_cmp_eq_u32 s{sPAR}, 0\ns_cselect_b32 s{sT}, 192, 0\nv_add_u32 v{vG6}, s{sT}, v26")
    b(f"v_lshl_add_u32 v26, v24, 7, v25\nv_add_u32 v26, 28672, v26\nv_bfe_u32 v27, v0, 3, 2")
    for s_ in range(4):
        b(f"v_xor_b32 v24, {s_}, v27\nv_lshl_add_u32 v{vQ+s_}, v24, 5, v26")
    b(f"s_lshl_b32 s{sT}, s{sPAR}, 3\nv_add_u32 v{vL16P}, s{sT}, v{vL16}")
    b(f"s_lshl_b32 s{sW4}, s{sWAVE}, 12")
    b(f"s_mul_i32 s{sT}, s{sTG}, 458752\ns_lshr_b32 s{sT2}, s{sCU}, 1\ns_mul_i32 s{sT2}, s{sT2}, {7*4096}\ns_add_u32 s{sT}, s{sT}, s{sT2}\ns_add_u32 s{sT}, s{sT}, {HF_OFF}")
    srd_off(b, 36, 10, f"s{sT}", 7 * 4096)
    b(f"s_lshl_b32 s{sT}, s{sTG}, 19\ns_lshl_b32 s{sT2}, s{sCU}, 14\ns_add_u32 s{sT}, s{sT}, s{sT2}\ns_add_u32 s{sT}, s{sT}, {OF_OFF}")
    srd_off(b, 40, 10, f"s{sT}", 16384)
    K0 = -2 * 0.7978845608028654 * LOG2E
    b(f"s_mov_b32 s{sGC}, {hex(f2u(K0*0.044715))}\ns_mov_b32 s{sGC+1}, {hex(f2u(K0))}")
    sc = (128 ** -0.5) * LOG2E
    b(f"s_mov_b32 s{sSC}, {hex(f2u(sc))}\ns_mov_b32 s{sSC+1}, {hex(f2u(sc))}")
    b(f"s_mov_b32 s30, {4096*2048}\ns_mov_b32 s31, 0x20000\ns_mov_b32 s34, {3584*2048}\ns_mov_b32 s35, 0x20000")
    b(f"s_lshl_b32 s{sPF}, s2, 13\ns_lshl_b32 s{sT}, s{sWAVE}, 11\ns_add_u32 s{sPF}, s{sPF}, s{sT}")
    b(f"v_lshrrev_b32 v24, 2, v0\nv_lshlrev_b32 v24, 7, v24\nv_and_b32 v25, 3, v0\nv_lshl_add_u32 v{vPF}, v25, 2, v24")
    b(f"s_mov_b32 s{sW}, {64*7168}\ns_mov_b32 s{sQ0}, {64*8192}\ns_mov_b32 s{sQ1}, {64*8192+128}\ns_mov_b32 s{sSD}, {SLOT}")
    G = {}
    spread(G, rest.L, 0, len(zm) - 1, cap=5)
    a(weave(zm, G))
    emit_items(w_dmas())
    a(f"s_mov_b32 s{sW}, {2*64*7168}\ns_mov_b32 s{sQ0}, {2*64*8192}\ns_mov_b32 s{sQ1}, {2*64*8192+128}\ns_mov_b32 s{sSD}, {2*SLOT}")
    a(f"s_mov_b32 s{sX0}, 8192\ns_mov_b32 s{sX1}, {8192+4096}\ns_mov_b32 s{sSR}, 0\ns_mov_b32 s{sCNT}, 7")
    a(f"s_mov_b32 s{sT2+2}, {(-2*SLOT) & 0xffffffff}\ns_mov_b32 s{sT2+3}, {SLOT}")
    a(f"s_waitcnt vmcnt({11 + ncw})\ns_barrier")
    st()
    a(w_reads(0, 0) + w_reads(1, 1))
    a("s_waitcnt lgkmcnt(4)")
    a(".p2align 6\nL_gq_loop:")
    mf, G = gq_stage(0, "normal"); a(weave(mf, G))
    mf, G = gq_stage(1, "normal")
    G.setdefault(174, []).extend([f"s_sub_u32 s{sCNT}, s{sCNT}, 1", f"s_cmp_lg_u32 s{sCNT}, 0"])
    a(weave(mf, G))
    a("s_cbranch_scc1 L_gq_loop")
    kvs = Asm(); b = kvs
    b(f"s_lshr_b32 s{sT}, s{sCU}, 3\ns_lshl_b32 s{sT}, s{sT}, 19\ns_add_u32 s{sT}, s{sT}, {1536*256}")
    srd_off(b, 28, 4, f"s{sT}", 131072)
    srd_off(b, 32, 6, f"s{sT}", 131072)
    b("v_lshrrev_b32 v24, 4, v0\nv_and_b32 v25, 15, v0\nv_lshlrev_b32 v26, 8, v24")
    for m in range(4):
        b(f"v_add_u32 v27, {4*m}, v24\nv_xor_b32 v27, v27, v25\nv_lshl_add_u32 v{vOK+m}, v27, 4, v26")
    b("v_and_b32 v27, 1, v0\nv_lshl_add_u32 v26, v27, 4, v26\nv_lshrrev_b32 v25, 1, v25")
    for e in range(2):
        b(f"v_add_u32 v27, {4*e}, v24\nv_xor_b32 v27, v27, v25\nv_lshl_add_u32 v{vOV+e}, v27, 5, v26")
    mf, G = gq_stage(0, "t14"); spread(G, kvs.L, 0, 33); a(weave(mf, G))
    mf, G = gq_stage(1, "t15"); a(weave(mf, G))
    st()
    emit_items(kv_static("K", 2, sT) + kv_static("V", 2, sT2))
    a("s_load_dwordx2 s[4:5], s[0:1], 0\ns_load_dwordx2 s[6:7], s[0:1], 32\ns_load_dwordx4 s[12:15], s[0:1], 64")
    a(f"s_mul_i32 s{sT}, s{sPAR}, {4*4096}\ns_add_u32 s{sT2}, s{sT}, 4096\ns_add_u32 s{sKo}, s{sT}, 8192\ns_mov_b32 s{sVo}, {3*4096}")
    TMP = [4, 6, 8, 10, 12, 14, 16, 24]
    def gelu_group(tiles):
        prs = []
        for (g, u, dst) in tiles:
            prs += [(g, u, dst), (g + 2, u + 2, dst + 1)]
        P = [(g, u, dst, TMP[k]) for k, (g, u, dst) in enumerate(prs)]
        for g, u, dst, t in P: a(f"v_pk_mul_f32 {vr(t,2)}, {vr(g,2)}, {vr(g,2)}")
        for g, u, dst, t in P: a(f"v_pk_fma_f32 {vr(t,2)}, {vr(t,2)}, s[{sGC}:{sGC+1}], s[{sGC}:{sGC+1}] op_sel:[0,0,1] op_sel_hi:[1,0,1]")
        for g, u, dst, t in P: a(f"v_pk_mul_f32 {vr(t,2)}, {vr(t,2)}, {vr(g,2)}")
        for g, u, dst, t in P: a(f"v_exp_f32 v{t}, v{t}\nv_exp_f32 v{t+1}, v{t+1}")
        for g, u, dst, t in P: a(f"v_pk_mul_f32 {vr(u,2)}, {vr(u,2)}, {vr(g,2)}")
        for g, u, dst, t in P: a(f"v_pk_add_f32 {vr(t,2)}, {vr(t,2)}, 1.0 op_sel_hi:[1,0]")
        for g, u, dst, t in P: a(f"v_rcp_f32 v{t}, v{t}\nv_rcp_f32 v{t+1}, v{t+1}")
        a("s_nop 0")
        for g, u, dst, t in P: a(f"v_pk_mul_f32 {vr(u,2)}, {vr(u,2)}, {vr(t,2)}")
        for g, u, dst, t in P: a(f"v_cvt_pk_bf16_f32 v{dst}, v{u}, v{u+1}")
    soffs = [sT, sT2, sKo]
    for p in range(3):
        for jj in range(2):
            tl = []
            for j in (2 * jj, 2 * jj + 1):
                d = gacc_i(0, 2 * p, j)
                tl += [(gacc_i(0, 2 * p, j), gacc_i(1, 2 * p, j), d), (gacc_i(0, 2 * p + 1, j), gacc_i(1, 2 * p + 1, j), d + 2)]
            gelu_group(tl)
            for j in (2 * jj, 2 * jj + 1):
                a(f"buffer_store_dwordx4 {vr(gacc_i(0, 2*p, j), 4)}, v{vL16}, s[36:39], s{soffs[p]} offen offset:{j*1024}{WT}")
    gelu_group([(gacc_i(0, 6, j), gacc_i(1, 6, j), gacc_i(0, 6, j)) for j in range(4)])
    for j in range(4):
        a(f"buffer_store_dwordx2 {vr(gacc_i(0, 6, j), 2)}, v{vL16P}, s[36:39], s{sVo} offen offset:{j*1024}{WT}")
    st()
    for t in range(4):
        B = 64
        for j in range(4):
            for r in range(4):
                a(f"v_accvgpr_read_b32 v{B + j*8 + r}, a{qacc_i(2*t, j) + r}")
            for r in range(4):
                a(f"v_accvgpr_read_b32 v{B + j*8 + 4 + r}, a{qacc_i(2*t+1, j) + r}")
        for q in range(16): a(f"v_pk_mul_f32 {vr(B+2*q,2)}, {vr(B+2*q,2)}, s[{sSC}:{sSC+1}]")
        for q in range(16): a(f"v_cvt_pk_bf16_f32 v{B+32+q}, v{B+2*q}, v{B+2*q+1}")
        for j in range(4):
            for r in range(2): a(f"v_permlane32_swap_b32 v{B+32+4*j+r}, v{B+32+4*j+2+r}")
        for j in range(4):
            for r in range(2): a(f"v_permlane16_swap_b32 v{B+32+4*j+r}, v{B+32+4*j+2+r}")
        for j in range(4):
            for r in range(4): a(f"v_accvgpr_write_b32 a{aQ + (j*4 + t)*4 + r}, v{B+32+4*j+r}")
    a("v_and_b32 v24, 15, v0\nv_lshrrev_b32 v25, 4, v0\nv_lshlrev_b32 v26, 8, v24\nv_add_u32 v26, 32768, v26")
    for ks in range(4):
        a(f"v_add_u32 v27, {4*ks}, v25\nv_xor_b32 v27, v27, v24\nv_lshl_add_u32 v{vK+ks}, v27, 4, v26")
    for i in range(16): a(f"v_mov_b32 v{NEGM+i}, 0")
    a("s_waitcnt vmcnt(0) lgkmcnt(0)\ns_barrier")
    st()
    a(k_reads(0, 0, aKB))
    srd_off(a, 36, 10, FL_OFF + CNT_REL, 16 * 256)
    a(f"v_mov_b32 v24, 1\ns_lshl_b32 s{sT}, s{sRB}, 8\nv_mov_b32 v25, s{sT}")
    a(f"s_cmp_eq_u32 s{sWAVE}, 0\ns_cbranch_scc0 L_noh\ns_mov_b64 exec, 1")
    a("buffer_atomic_add v24, v25, s[36:39], 0 offen")
    a("s_mov_b64 exec, -1\nL_noh:")
    su = Asm(); b = su
    b("v_lshrrev_b32 v24, 2, v0\nv_and_b32 v25, 3, v0\nv_lshlrev_b32 v25, 3, v25\nv_lshl_add_u32 v25, v24, 8, v25\nv_add_u32 v25, 65536, v25\nv_and_b32 v24, 7, v24")
    for T in range(8):
        b(f"v_xor_b32 v27, {T}, v24\nv_lshl_add_u32 v{vV+T}, v27, 5, v25")
    b("v_mov_b32 v24, 0x3f803f80")
    for i in range(4): b(f"v_accvgpr_write_b32 a{aONE+i}, v24")
    b(f"s_add_u32 s{sKo}, s{sW4}, {4*16384}\ns_add_u32 s{sVo}, s{sW4}, {3*16384}")
    b(f"s_mov_b32 s{sMK}, {kslot(4)-KBASE}\ns_mov_b32 s{sMV}, {vslot(3)-VBASE}")
    b(f"s_add_u32 s{sT2+2}, s{sW4}, {KBASE}\ns_add_u32 s{sT2+3}, s{sW4}, {VBASE}\ns_mov_b32 s{sCNT}, 2")
    for i in range(4): b(f"v_mov_b32 v{28+i}, 0")
    zo = [f"v_mfma_f32_32x32x16_bf16 {ar(16*i, 16)}, v[28:31], v[28:31], 0" for i in range(8)] + [f"v_mfma_f32_32x32x16_bf16 {ar(aL, 16)}, v[28:31], v[28:31], 0"]
    a("s_waitcnt lgkmcnt(0)")
    bufs = (aKB, aVB)
    grp = [(s_mf(i, 0, bufs[i & 1]), k_reads(i, 0, bufs[i & 1])) for i in range(4)]
    a(att_block(grp, k_reads(0, 1, aKB), su.L, (3, ["s_waitcnt lgkmcnt(0)"])))
    a("s_waitcnt lgkmcnt(0)")
    togK = [f"v_xor_b32 v{vK+k}, 0x8000, v{vK+k}" for k in range(4)]
    togV = [f"v_xor_b32 v{vV+k}, 0x8000, v{vV+k}" for k in range(8)]
    grp = [(s_mf(i, 1, bufs[i & 1]), k_reads(i, 1, bufs[i & 1])) for i in range(4)]
    grp.append((zo, []))
    a(att_block(grp, k_reads(0, 0, aKB), sm_ops(0, 0), (3, ["s_waitcnt lgkmcnt(0)", "s_barrier"]), extra_at_sync=togK))
    a("s_waitcnt lgkmcnt(0)\ns_nop 7\ns_nop 3")
    def full_iter(par, dm, tail):
        sb, pb = par, par
        grp = []
        for i in range(4):
            grp.append((s_mf(i, sb, aKB), k_reads(i, par, aKB)))
            grp.append((v_mf(i, pb, aVB), v_reads(i, par, aVB)))
        grp.append((l_mf(pb), []))
        ext = (togK if par == 1 else [])
        return grp, ext
    upd = [f"s_add_u32 s{sKo}, s{sKo}, 16384", f"s_add_u32 s{sVo}, s{sVo}, 16384", f"s_add_u32 s{sMK}, s{sMK}, 16384", f"s_and_b32 s{sMK}, s{sMK}, 0xffff",
           f"s_add_u32 s{sMV}, s{sMV}, 16384", f"s_and_b32 s{sMV}, s{sMV}, 0xffff"]
    dmK = kv_dmas("K", f"s{sKo}", f"s_add_u32 m0, s{sMK}, s{sT2+2}")
    dmV = kv_dmas("V", f"s{sVo}", f"s_add_u32 m0, s{sMV}, s{sT2+3}")
    a(".p2align 6\nL_att_loop:")
    for par in range(2):
        grp, ext = full_iter(par, None, None)
        nxt = k_reads(0, par ^ 1, aKB) + (togV if par == 1 else []) + upd
        if par == 1: nxt = nxt + [f"s_sub_u32 s{sCNT}, s{sCNT}, 1", f"s_cmp_lg_u32 s{sCNT}, 0"]
        a(att_block(grp, nxt, sm_ops(par ^ 1, par ^ 1), (7, ["s_waitcnt vmcnt(8) lgkmcnt(0)", "s_barrier"]), dmas=dmK + dmV, extra_at_sync=ext))
        a("s_waitcnt lgkmcnt(0)")
    a("s_cbranch_scc1 L_att_loop")
    p3 = Asm(); b = p3
    b(f"s_bfe_u32 s{sTY}, s2, 0x10002")
    b(f"s_and_b32 s{sTB}, s2, 3\ns_lshl_b32 s{sTB}, s{sTB}, 2\ns_bfe_u32 s{sU}, s2, 0x20003\ns_add_u32 s{sTB}, s{sTB}, s{sU}")
    b(f"s_lshr_b32 s{sNB}, s2, 5")
    b(f"s_and_b32 s{sTH}, s{sWAVE}, 1\ns_lshr_b32 s{sKH}, s{sWAVE}, 1")
    b("v_bfe_u32 v24, v0, 1, 2\nv_lshrrev_b32 v25, 4, v0\nv_xor_b32 v24, v24, v25\nv_lshlrev_b32 v24, 5, v24\nv_and_b32 v26, 1, v0\nv_lshl_add_u32 v24, v26, 4, v24")
    b(f"v_lshrrev_b32 v26, 3, v0\nv_lshl_add_u32 v{vOB}, v26, 11, v24")
    for rg in range(1, 4): b(f"v_add_u32 v{vOB+rg}, {rg*(16384-1024)}, v{vOB}")
    b(f"s_lshl_b32 s{sU}, s{sTB}, 1\ns_add_u32 s{sU}, s{sU}, s{sTH}")
    b([[f"s_mov_b32 s{sU2}, 458752", f"s_mov_b32 s{sU3}, {HF_OFF}"]])
    p3a = p3.L + [[f"s_cmp_eq_u32 s{sTY}, 0", f"s_cmov_b32 s{sU2}, 524288", f"s_cmov_b32 s{sU3}, {OF_OFF}", "s_cselect_b32 s20, s6, s12", "s_cselect_b32 s21, s7, s13", f"s_cselect_b32 s{sCN}, 8, 7"]]
    p3 = Asm(); b = p3
    b(f"s_mul_i32 s{sU}, s{sU}, s{sU2}\ns_add_u32 s{sU}, s{sU}, s{sU3}\ns_lshr_b32 s{sU2}, s{sU2}, 1\ns_mul_i32 s{sU3}, s{sU2}, s{sKH}\ns_add_u32 s{sU}, s{sU}, s{sU3}")
    p3a += p3.L + [[f"s_add_u32 s16, s10, s{sU}", "s_addc_u32 s17, s11, 0"], f"s_mov_b32 s18, s{sU2}", "s_mov_b32 s19, 0x20000"]
    p3 = Asm(); b = p3
    b(f"s_lshl_b32 s{sU2}, s{sU2}, 4\ns_mul_i32 s{sU}, s{sU2}, s{sKH}\ns_lshl_b32 s{sU3}, s{sTH}, 16\ns_sub_u32 s22, s{sU2}, s{sU3}\ns_add_u32 s{sU}, s{sU}, s{sU3}")
    b(f"s_lshl_b32 s{sU3}, s{sNB}, 8\ns_add_u32 s{sU}, s{sU}, s{sU3}\ns_sub_u32 s22, s22, s{sU3}")
    p3a += p3.L + [[f"s_add_u32 s20, s20, s{sU}", "s_addc_u32 s21, s21, 0"], "s_mov_b32 s23, 0x20000"]
    p3 = Asm(); b = p3
    b(f"s_lshl_b32 s{sMB}, s{sKH}, 14\ns_lshl_b32 s{sU}, s{sTH}, 12\ns_add_u32 s{sMB}, s{sMB}, s{sU}")
    b(f"s_mov_b32 s{sA0}, 0\ns_mov_b32 s{sA1}, 4096\ns_mov_b32 s{sB0}, 0\ns_mov_b32 s{sB1}, 128")
    b(f"v_lshrrev_b32 v24, 2, v0\nv_and_b32 v25, 3, v0\nv_lshlrev_b32 v25, 3, v25\nv_lshl_add_u32 v26, v24, 7, v25\ns_lshl_b32 s{sU3}, s{sKH}, 14\nv_add_u32 v26, s{sU3}, v26\nv_bfe_u32 v27, v0, 3, 2")
    for s_ in range(4):
        b(f"v_xor_b32 v24, {s_}, v27\nv_lshl_add_u32 v{vW+s_}, v24, 5, v26\nv_add_u32 v{vW+4+s_}, 65536, v{vW+s_}")
    b(f"s_lshl_b32 s{sU}, s{sTB}, 7\ns_lshl_b32 s{sU2}, s{sTH}, 6\ns_add_u32 s{sU}, s{sU}, s{sU2}\ns_lshl_b32 s{sU2}, s{sKH}, 5\ns_add_u32 s{sU}, s{sU}, s{sU2}")
    b(f"s_lshl_b32 s{sU}, s{sU}, 11\ns_lshl_b32 s{sU2}, s{sNB}, 8\ns_add_u32 s{sU}, s{sU}, s{sU2}")
    p3a += p3.L + [[f"s_add_u32 s24, s4, s{sU}", "s_addc_u32 s25, s5, 0"], f"s_mov_b32 s26, {31*2048+256}", "s_mov_b32 s27, 0x20000",
                   [f"s_add_u32 s4, s14, s{sU}", "s_addc_u32 s5, s15, 0"], f"s_mov_b32 s6, {31*2048+256}", "s_mov_b32 s7, 0x20000"]
    def merge(x, y):
        out = []; i = j = 0
        while i < len(x) or j < len(y):
            if j >= len(y) or (i < len(x) and i * len(y) <= j * len(x)): out.append(x[i]); i += 1
            else: out.append(y[j]); j += 1
        return out
    grp, ext = full_iter(0, None, None)
    a(att_block(grp, k_reads(0, 1, aKB), merge(sm_ops(1, 1), p3a[:len(p3a)//2]), (7, ["s_waitcnt vmcnt(4) lgkmcnt(0)", "s_barrier"]), dmas=dmV))
    a("s_waitcnt lgkmcnt(0)")
    grp, ext = full_iter(1, None, None)
    a(att_block(grp, togV, merge(sm_ops(0, 0), p3a[len(p3a)//2:]), (7, ["s_waitcnt vmcnt(0) lgkmcnt(0)", "s_barrier"])))
    vb = (aVB, aKB)
    def with_upd(dm): return dm[:-1] + [(dm[-1][0], dm[-1][1] + "\n" + "\n".join(updB))]
    grp = [(l_mf(0), [])] + [(v_mf(i, 0, vb[i & 1]), v_reads(i, 0, vb[i & 1])) for i in range(4)]
    a(att_block(grp, v_reads(0, 1, aVB), sm_ops(1, 1), (4, ["s_waitcnt lgkmcnt(0)"]), dmas=with_upd(p3_dma(0)), dstep=6))
    a("s_waitcnt lgkmcnt(0)\ns_nop 1")
    grp = [(v_mf(i, 1, vb[i & 1]), v_reads(i, 1, vb[i & 1])) for i in range(4)]
    grp = [(l_mf(1) + v_mf(0, 1, vb[0]), v_reads(0, 1, vb[0]))] + grp[1:4]
    a(att_block(grp, [], [], (None, []), dmas=with_upd(p3_dma(1)) + with_upd(p3_dma(2)), dstep=4))
    st()
    for j in range(4): a(f"v_accvgpr_read_b32 v{24+2*j}, a{aL+4*j}")
    for j in range(4): a(f"v_rcp_f32 v{24+2*j}, v{24+2*j}")
    a(f"s_mov_b32 s{sT}, 4096\ns_mov_b32 s{sT2}, 8192\ns_mov_b32 s{sKo}, 12288\ns_nop 4")
    so = ["0", f"s{sT}", f"s{sT2}", f"s{sKo}"]
    for t in range(4):
        B = 32 + 48 * t
        for j in range(4):
            for tl in range(2):
                for r in range(4): a(f"v_accvgpr_read_b32 v{B + j*8 + tl*4 + r}, a{((2*t+tl)*4 + j)*4 + r}")
        for j in range(4):
            for q in range(4): a(f"v_pk_mul_f32 {vr(B+j*8+2*q,2)}, {vr(B+j*8+2*q,2)}, {vr(24+2*j,2)} op_sel_hi:[1,0]")
        for q in range(16): a(f"v_cvt_pk_bf16_f32 v{B+32+q}, v{B+2*q}, v{B+2*q+1}")
        for j in range(4): a(f"buffer_store_dwordx4 {vr(B+32+4*j,4)}, v{vL16}, s[40:43], {so[t]} offen offset:{j*1024}{WT}")
    a("v_lshrrev_b32 v25, 4, v0\nv_and_b32 v26, 15, v0\nv_lshlrev_b32 v27, 11, v25")
    for m in range(4):
        a(f"v_add_u32 v24, {4*m}, v25\nv_xor_b32 v24, v24, v26\nv_lshl_add_u32 v{18+m}, v24, 4, v27")
        if m: a(f"v_add_u32 v{18+m}, {m*(8192-1024)}, v{18+m}")
    a(f"v_lshl_add_u32 v{vXR}, v26, 4, v27")
    a(f"s_mul_i32 s{sU3}, s{sWAVE}, 9216\ns_add_u32 s{sU3}, s{sU3}, 65536")
    a(f"v_mul_u32_u24 v24, 272, v26\nv_lshl_add_u32 v24, v25, 3, v24\nv_add_u32 v{vTW}, s{sU3}, v24")
    a(f"v_mul_u32_u24 v24, 272, v25\nv_lshl_add_u32 v24, v26, 4, v24\nv_add_u32 v{vTR}, s{sU3}, v24")
    a(f"s_lshl_b32 s{sU2}, s{sTB}, 3\ns_add_u32 s{sU2}, s{sU2}, s{sNB}\ns_lshl_b32 s{sU2}, s{sU2}, 2\ns_add_u32 s{sU2}, s{sU2}, s{sWAVE}")
    a(f"s_lshl_b32 s{sU3}, s{sU2}, 14\ns_add_u32 s{sU3}, s{sU3}, {EX_OFF}")
    srd_off(a, 28, 10, f"s{sU3}", 16384)
    a(f"s_lshl_b32 s{sU3}, s{sU2}, 6\ns_add_u32 s{sU3}, s{sU3}, {FL_OFF}")
    srd_off(a, 32, 10, f"s{sU3}", 64)
    a(f"s_lshl_b32 s{sU}, s{sWAVE}, 13\ns_add_u32 s{sU}, s{sU}, 131072\ns_mov_b32 s{sU2}, 32768")
    a(f"s_lshr_b32 s{sT}, s{sTB}, 1\ns_xor_b32 s{sT2}, s{sTY}, 1\ns_lshl_b32 s{sT2}, s{sT2}, 3\ns_add_u32 s{sT}, s{sT}, s{sT2}\ns_lshl_b32 s{sT}, s{sT}, 8\nv_mov_b32 v22, s{sT}")
    a(f"v_mov_b32 v24, 1\ns_lshl_b32 s{sT}, s{sRB}, 8\ns_add_u32 s{sT}, s{sT}, 2048\nv_mov_b32 v25, s{sT}")
    a("s_waitcnt vmcnt(0)\ns_barrier")
    a(f"s_cmp_eq_u32 s{sWAVE}, 0\ns_cbranch_scc0 L_noo\ns_mov_b64 exec, 1")
    a("buffer_atomic_add v24, v25, s[36:39], 0 offen")
    a("s_mov_b64 exec, -1\nL_noo:")
    st()
    for hf in range(2):
        a(f"s_add_u32 m0, s{sU}, {hf*4096}\ns_nop 0")
        for m in range(4):
            a(f"buffer_load_dwordx4 v{18+m}, s[24:27], {'0' if hf == 0 else 's%d' % sU2} offen offset:{1024*m} lds")
    a(f"s_mov_b32 s{sT2}, 0x4000")
    a("L_poll:\nbuffer_load_dword v23, v22, s[36:39], 0 offen sc1\ns_waitcnt vmcnt(0)")
    a(f"v_readfirstlane_b32 s{sT}, v23\ns_sub_u32 s{sT2}, s{sT2}, 1\ns_cmp_eq_u32 s{sT2}, 0\ns_cbranch_scc1 L_polled\ns_cmp_ge_u32 s{sT}, 32\ns_cbranch_scc0 L_poll\nL_polled:")
    st()
    for q in range(3):
        emit_items(p3_act(q)); a(updA)
    a(f"v_and_b32 v24, 15, v0\nv_lshlrev_b32 v25, 8, v24\nv_bfe_u32 v26, v0, 4, 1\nv_lshl_add_u32 v25, v26, 3, v25\nv_add_u32 v25, s{sU}, v25\nv_lshrrev_b32 v26, 5, v0\nv_xor_b32 v24, v24, v26")
    for T in range(8):
        a(f"v_xor_b32 v26, {2*T}, v24\nv_lshl_add_u32 v{32+T}, v26, 4, v25")
    for i in range(4): a(f"v_mov_b32 v{28+i}, 0")
    for jp in range(2):
        for T in range(8):
            a(f"ds_read_b64 {vr(40 + 2*T, 2)}, v{32+T} offset:{jp*4096}")
        for i in range(4): a(f"v_mfma_f32_32x32x16_bf16 {vr(ACC + 64*jp + 16*i, 16)}, v[28:31], v[28:31], 0")
        a("s_waitcnt lgkmcnt(0)")
        for T in range(8):
            d = XV + (jp * 8 + T) * 4
            for r in range(2):
                a(f"v_lshlrev_b32 v{d+2*r}, 16, v{40+2*T+r}\nv_and_b32 v{d+2*r+1}, 0xffff0000, v{40+2*T+r}")
    a(p3_rds(0, 0, 0) + p3_rds(1, 0, 1))
    a("s_waitcnt vmcnt(8) lgkmcnt(4)")
    st()
    a(".p2align 6\nL_p3_loop:")
    for q in range(4):
        mf = [mfma(vr(acc_i(T, j), 4), ar(wf(T % 4, ks), 4), afr(q, ks, j)) for T in range(8) for j in range(4) for ks in range(2)]
        G = {}
        def add(g, *x): G.setdefault(g, []).extend(x)
        for T in range(6):
            for k, r in enumerate(p3_rds(T + 2, q, (T + 2) % 4)): add(8 * T + k + (k > 1), r)
        dm, ac = p3_dma((q + 3) % 4), p3_act((q + 3) % 4)
        vm = [x for pr in zip(dm, ac) for x in pr]
        pos = [2 + 4 * k for k in range(16)]
        nbefore = sum(1 for g in pos if g < 55)
        for (pre, ins), g in zip(vm, pos):
            add(g - 1, *pre); add(g, ins)
        add(60, *updB); add(63, *updA)
        for T in range(1, 7): add(8 * T - 1, "s_waitcnt lgkmcnt(4)")
        add(55, f"s_waitcnt vmcnt({16 + nbefore}) lgkmcnt(0)", "s_barrier")
        rd = p3_rds(0, (q + 1) % 4, 0) + p3_rds(1, (q + 1) % 4, 1)
        for k, g in enumerate((56, 57, 59, 61)): add(g, rd[2 * k], rd[2 * k + 1])
        if q == 3: add(63, f"s_sub_u32 s{sCN}, s{sCN}, 1", f"s_cmp_lg_u32 s{sCN}, 0")
        add(63, "s_waitcnt lgkmcnt(4)")
        a(weave(mf, G))
    a("s_cbranch_scc1 L_p3_loop")
    st()
    a("v_mov_b32 v20, 1\nv_mov_b32 v21, 0\ns_mov_b64 exec, 1")
    a("buffer_atomic_add v20, v21, s[32:35], 0 offen sc0")
    a("s_mov_b64 exec, -1")
    a(f"s_lshl_b32 s{sU2}, s{sWAVE}, 14\nv_add_u32 v22, s{sU2}, v{vL16}\ns_xor_b32 s{sU2}, s{sU2}, 0x8000\nv_add_u32 v23, s{sU2}, v{vL16}")
    a("s_waitcnt vmcnt(1) lgkmcnt(0)\ns_barrier")
    a(f"s_cmp_eq_u32 s{sKH}, 0\ns_cbranch_scc0 L_kh1")
    for kh in range(2):
        if kh == 1: a("L_kh1:")
        for jp in range(2):
            for T in range(8):
                a(f"ds_write_b128 v22, {vr(acc_i(T, 2*(1-kh) + jp), 4)} offset:{(jp*8+T)*1024}")
        a("s_waitcnt lgkmcnt(0)\ns_barrier")
        for jp in range(2):
            for T in range(8):
                a(f"ds_read_b128 {vr(acc_i(T, 2*(1-kh) + jp), 4)}, v23 offset:{(jp*8+T)*1024}")
        k = 0
        for jp in range(2):
            for T in range(8):
                a(f"s_waitcnt lgkmcnt({15-k})"); k += 1
                for h in range(2):
                    a(f"v_pk_add_f32 {vr(acc_i(T, jp) + 2*h, 2)}, {vr(acc_i(T, jp) + 2*h, 2)}, {vr(acc_i(T, 2 + jp) + 2*h, 2)}")
        if kh == 0: a("s_branch L_red")
    a("L_red:")
    R = [acc_i(T, jp) for jp in range(2) for T in range(8)]
    TM = [acc_i(T, 2 + jp) for jp in range(2) for T in range(8)]
    a(f"s_cmp_eq_u32 s{sTY}, 0\ns_cbranch_scc1 L_nosilu")
    a(f"s_mov_b32 s66, {hex(f2u(-LOG2E))}\ns_mov_b32 s67, {hex(f2u(-LOG2E))}")
    for blk in range(4):
        idx = range(4 * blk, 4 * blk + 4)
        for k in idx:
            for h in range(2): a(f"v_pk_mul_f32 {vr(TM[k]+2*h,2)}, {vr(R[k]+2*h,2)}, s[66:67]")
        for k in idx:
            for r in range(4): a(f"v_exp_f32 v{TM[k]+r}, v{TM[k]+r}")
        a("s_nop 0")
        for k in idx:
            for h in range(2): a(f"v_pk_add_f32 {vr(TM[k]+2*h,2)}, {vr(TM[k]+2*h,2)}, 1.0 op_sel_hi:[1,0]")
        for k in idx:
            for r in range(4): a(f"v_rcp_f32 v{TM[k]+r}, v{TM[k]+r}")
        a("s_nop 0")
        for k in idx:
            for h in range(2): a(f"v_pk_mul_f32 {vr(R[k]+2*h,2)}, {vr(R[k]+2*h,2)}, {vr(TM[k]+2*h,2)}")
    a("L_nosilu:")
    a(f"s_waitcnt vmcnt(0)\nv_readfirstlane_b32 s{sU}, v20")
    a(f"s_mov_b32 s{sT}, 4096\ns_mov_b32 s{sT2}, 8192\ns_mov_b32 s{sKo}, 12288")
    a(f"s_cmp_eq_u32 s{sU}, 0\ns_cbranch_scc0 L_second")
    for k in range(16):
        a(f"buffer_store_dwordx4 {vr(R[k], 4)}, v{vL16}, s[28:31], {so[k>>2]} offen offset:{(k&3)*1024} sc0 sc1")
    a("s_waitcnt vmcnt(0)\nv_mov_b32 v20, 0x100\ns_mov_b64 exec, 1")
    a("buffer_atomic_add v20, v21, s[32:35], 0 offen")
    a("s_branch L_fin")
    a("L_second:")
    a(f"s_cmp_ge_u32 s{sU}, 0x100\ns_cbranch_scc1 L_go")
    a(f"s_mov_b64 exec, 1\ns_mov_b32 s{sU2}, 0x4000")
    a("L_poll2:\nv_mov_b32 v20, 0\ns_sleep 1\nbuffer_atomic_add v20, v21, s[32:35], 0 offen sc0\ns_waitcnt vmcnt(0)")
    a(f"v_readfirstlane_b32 s{sU}, v20\ns_sub_u32 s{sU2}, s{sU2}, 1\ns_cmp_eq_u32 s{sU2}, 0\ns_cbranch_scc1 L_polled2\ns_cmp_ge_u32 s{sU}, 0x100\ns_cbranch_scc0 L_poll2")
    a("L_polled2:\ns_mov_b64 exec, -1")
    a("L_go:")
    for k in range(16):
        a(f"buffer_load_dwordx4 {vr(TM[k], 4)}, v{vL16}, s[28:31], {so[k>>2]} offen offset:{(k&3)*1024} sc0 sc1")
    for q in range(8):
        a(f"s_waitcnt vmcnt({14-2*q})")
        for kk in range(2):
            k = 2 * q + kk
            for h in range(2):
                a(f"v_pk_fma_f32 {vr(R[k]+2*h,2)}, {vr(R[k]+2*h,2)}, {vr(TM[k]+2*h,2)}, {vr(XV+4*k+2*h,2)}")
        for kk in range(2):
            k = 2 * q + kk
            for h in range(2): a(f"v_cvt_pk_bf16_f32 v{TM[k]+h}, v{R[k]+2*h}, v{R[k]+2*h+1}")
        for kk in range(2):
            k = 2 * q + kk
            jp, T = k >> 3, k & 7
            a(f"ds_write_b64 v{vTW}, {vr(TM[k],2)} offset:{jp*16*272 + T*32}")
    a("s_waitcnt lgkmcnt(0)")
    for q in range(8): a(f"ds_read_b128 {vr(32+4*q,4)}, v{vTR} offset:{q*4*272}")
    for q in range(8):
        a(f"s_mov_b32 s{sU2}, {q*8192}\ns_waitcnt lgkmcnt({7-q})")
        a(f"buffer_store_dwordx4 {vr(32+4*q,4)}, v{vXR}, s[4:7], s{sU2} offen")
    a("L_fin:")
    if STAMP: a("s_waitcnt vmcnt(0)")
    st.flush(sWAVE, 24)
    a("L_done:\ns_endpgm")
    return a, desc(n, 512, 256), f"; @launch kernel={n} grid=(256,1,1) block=(256,1,1) lds=163840"

def build(fn, kb=48):
    ks = [gen_ln(), gen_main(kb)]
    for k, nm in zip(ks, ("ln", "main")):
        ne = check_hazards(k[0].L, nm)
        print(nm, "instrs", len(k[0].L), "hazards", ne)
    hdr = open("recurrent_scan__sliding_block_cached__geglu_ffn__prompt.s.ref").read().split("; Override launch")[0]
    out = [hdr.rstrip()]
    out += [k[2] for k in ks]
    out.append('.amdgcn_target "amdgcn-amd-amdhsa--gfx950"\n.text')
    for i in (1, 0): out.append(ks[i][0].text())
    out.append(".p2align 8\n.fill 1024, 4, 0xbf800000")
    out.append('.section .rodata,"a"')
    for k in ks: out.append(k[1])
    open(fn, "w").write("\n".join(out) + "\n")

if __name__ == "__main__":
    STAMP = len(sys.argv) > 2 and sys.argv[2] == "stamp"
    for kv in sys.argv[3:]:
        k, v = kv.split("="); OPT[k] = int(v)
    build(sys.argv[1] if len(sys.argv) > 1 else "k.s")
```
